```python
import torch

def _softmax(x, axis=-1):
    return torch.softmax(x, dim=axis)
def _gelu(x):
    return torch.nn.functional.gelu(x, approximate="tanh")
def _silu(x):
    return torch.nn.functional.silu(x)
def _sigmoid(x):
    return torch.sigmoid(x)
def _layernorm(x, axis=-1, eps=1e-5):
    m = x.mean(dim=axis, keepdim=True)
    v = x.var(dim=axis, keepdim=True, unbiased=False)
    return (x - m) / torch.sqrt(v + eps)
def _scatter_add(tgt, idx, src, axis=0):
    return tgt.clone().index_add_(axis, idx, src)
def _segment_sum(src, seg, n):
    out = torch.zeros((n,) + src.shape[1:], dtype=src.dtype)
    return out.index_add_(0, seg, src)
def _pad(x, pw):
    flat = tuple(v for pair in reversed(pw) for v in pair)
    return torch.nn.functional.pad(x, flat)

kernel_name = 'interleave_layers__linear_attn_block__glu_gated_swiglu__prompt'

def setup_inputs():

    _w = (lambda a: (lambda t: t.to(torch.bfloat16) if t.is_floating_point() else t)(torch.as_tensor(a)))
    def _A_setup():
        B, S, D = 1, 2048, 448
        return {
            "x": _w((lambda *s: torch.randn(*s, dtype=torch.bfloat16) * 0.05)(B, S, D)),
            "wqkv": _w((lambda *s: torch.randn(*s, dtype=torch.bfloat16) * 0.05)(D, 3 * D)),
            "wo": _w((lambda *s: torch.randn(*s, dtype=torch.bfloat16) * 0.05)(D, D)),
        }
    _A_in = _A_setup()

    def _B_setup():
        B, S, D, F = 1, 2048, 448, 1792
        return {
            "x": _w((lambda *s: torch.randn(*s, dtype=torch.bfloat16) * 0.05)(B, S, D)),
            "w1": _w((lambda *s: torch.randn(*s, dtype=torch.bfloat16) * 0.4)(D, F) * (2.0 / D) ** 0.5),
            "w3": _w((lambda *s: torch.randn(*s, dtype=torch.bfloat16) * 0.4)(D, F) * (2.0 / D) ** 0.5),
            "w2": _w((lambda *s: torch.randn(*s, dtype=torch.bfloat16) * 0.4)(F, D) * (2.0 / F) ** 0.5),
        }
    _B_in = _B_setup()

    return {
        "A_x": _A_in["x"],
        "A_wqkv": _A_in["wqkv"],
        "A_wo": _A_in["wo"],
        "B_x": _B_in["x"],
        "B_w1": _B_in["w1"],
        "B_w3": _B_in["w3"],
        "B_w2": _B_in["w2"],
    }

def reference(A_x, A_wqkv, A_wo, B_x, B_w1, B_w3, B_w2):
    def _A_ref(x, wqkv, wo):
        B, S, D = x.shape
        H = 16; Dh = D // H
        qkv = (lambda x, *d: x.permute(*d))((x @ wqkv).reshape(B, S, 3, H, Dh), 2, 0, 3, 1, 4)
        q, k, v = qkv[0], qkv[1], qkv[2]
        phi = lambda t: torch.where(t > 0, t + 1, torch.exp(t)) + 1e-6
        pq, pk = phi(q), phi(k)
        kv = torch.einsum("bhsd,bhse->bhde", pk, v)
        z = torch.einsum("bhsd->bhd", pk)
        num = torch.einsum("bhqd,bhde->bhqe", pq, kv)
        den = torch.einsum("bhqd,bhd->bhq", pq, z)[..., None] + 1e-6
        o = num / den
        return (lambda x, *d: x.permute(*d))(o, 0, 2, 1, 3).reshape(B, S, D) @ wo

    def _B_ref(x, w1, w3, w2):
        gate = torch.einsum("bsd,df->bsf", x, w1)
        up = torch.einsum("bsd,df->bsf", x, w3)
        h = _silu(gate) * up
        out = torch.einsum("bsf,fd->bsd", h, w2)
        return out

    x = A_x
    x = x + _A_ref(_layernorm(x, axis=-1), A_wqkv, A_wo)
    x = x + _B_ref(_layernorm(x, axis=-1), B_w1, B_w3, B_w2)
    x = x + _A_ref(_layernorm(x, axis=-1), A_wqkv, A_wo)
    x = x + _B_ref(_layernorm(x, axis=-1), B_w1, B_w3, B_w2)
    return x
```

```python
import re

REG_RE = re.compile(r'^(-|abs\()?([vas])(\d+)\)?$|^(-|abs\()?([vas])\[(\d+):(\d+)\]\)?$')

def parse_reg(op):
    op = op.strip()
    if op in ('vcc',): return [('s', 106), ('s', 107)]
    if op == 'vcc_lo': return [('s', 106)]
    if op == 'vcc_hi': return [('s', 107)]
    if op == 'exec': return [('s', 126), ('s', 127)]
    if op == 'exec_lo': return [('s', 126)]
    if op == 'exec_hi': return [('s', 127)]
    if op == 'm0': return [('s', 124)]
    m = REG_RE.match(op)
    if not m: return []
    if m.group(2):
        return [(m.group(2), int(m.group(3)))]
    return [(m.group(5), i) for i in range(int(m.group(6)), int(m.group(7)) + 1)]

TRANS = ('v_exp_f32', 'v_log_f32', 'v_rcp_f32', 'v_rsq_f32', 'v_sqrt_f32', 'v_sin_f32', 'v_cos_f32')

class Ins:
    __slots__ = ('text', 'mn', 'cls', 'rd', 'wr', 'ws', 'srcc', 'ab', 'wide_store', 'lds_dma', 'data')
    def __init__(self, text):
        self.text = text
        t = text.split(';')[0].strip()
        parts = t.split(None, 1)
        mn = parts[0]
        self.mn = mn
        rest = parts[1] if len(parts) > 1 else ''
        ops = [o.strip() for o in re.split(r',(?![^\[]*\])', rest)] if rest else []
        mods = []
        if ops:
            sp = ops[-1].split()
            if sp:
                ops[-1] = sp[0]; mods = sp[1:]
        regs = [parse_reg(o) for o in ops]
        self.rd = set(); self.wr = set(); self.ws = 1
        self.srcc = set(); self.ab = set(); self.wide_store = False; self.lds_dma = False; self.data = set()
        R = lambda i: set(regs[i]) if i < len(regs) else set()
        allr = lambda a: set().union(*[set(r) for r in regs[a:]]) if len(regs) > a else set()
        if mn == 's_nop':
            self.cls = 'nop'; self.ws = int(ops[0], 0) + 1
        elif mn.startswith('v_mfma'):
            self.cls = 'mfma'; self.wr = R(0); self.ab = R(1) | R(2); self.srcc = R(3); self.rd = self.ab | self.srcc
        elif mn.startswith('v_'):
            base = mn.replace('_e32', '').replace('_e64', '')
            self.cls = 'dot' if base.startswith('v_dot') else ('trans' if base in TRANS else 'valu')
            if base.startswith('v_permlane') and 'swap' in base:
                self.cls = 'perm'; self.wr = R(0) | R(1); self.rd = R(0) | R(1)
            elif base.startswith('v_cmp'):
                self.wr = R(0); self.rd = allr(1)
            elif base in ('v_add_co_u32', 'v_sub_co_u32', 'v_addc_co_u32', 'v_subb_co_u32'):
                self.wr = R(0) | R(1); self.rd = allr(2)
            elif base in ('v_readfirstlane_b32', 'v_readlane_b32'):
                self.cls = 'rdlane'; self.wr = R(0); self.rd = allr(1)
            else:
                self.wr = R(0); self.rd = allr(1)
                if base in ('v_fmac_f32', 'v_dot2c_f32_bf16', 'v_writelane_b32'): self.rd |= R(0)
                if base == 'v_cndmask_b32' and len(ops) == 3: self.rd |= set(parse_reg('vcc'))
            if any(m.startswith(('row_', 'quad_perm', 'wave_')) for m in mods) or '_dpp' in mn: self.cls = 'dpp'
        elif mn.startswith('ds_'):
            self.cls = 'ds'
            if mn.startswith(('ds_read', 'ds_bpermute', 'ds_permute', 'ds_swizzle')):
                self.wr = R(0); self.rd = allr(1)
            else:
                self.rd = allr(0)
        elif mn.startswith(('buffer_', 'global_')):
            self.cls = 'vmem'
            if mn in ('buffer_inv', 'buffer_wbl2'):
                pass
            elif 'lds' in mods or '_lds_' in mn:
                self.lds_dma = True; self.rd = allr(0) | set(parse_reg('m0'))
            elif '_load' in mn:
                self.wr = R(0); self.rd = allr(1)
            else:
                self.rd = allr(0)
                self.data = R(0) if mn.startswith('buffer_') else R(1)
                if 'x4' in mn or 'x3' in mn: self.wide_store = True
                if 'atomic' in mn and 'sc0' in mods: self.wr = R(0)
        elif mn.startswith(('s_load', 's_buffer_load', 's_memtime', 's_memrealtime')):
            self.cls = 'smem'; self.wr = R(0); self.rd = allr(1)
        elif mn.startswith('s_'):
            self.cls = 'salu'
            if mn.startswith(('s_cmp', 's_cbranch', 's_branch', 's_waitcnt', 's_barrier', 's_endpgm', 's_sleep', 's_setprio', 's_bitcmp')):
                self.rd = allr(0)
            else:
                self.wr = R(0); self.rd = allr(1)
                if 'saveexec' in mn: self.wr |= set(parse_reg('exec')); self.rd |= set(parse_reg('exec'))
        else:
            raise ValueError('unknown instruction: ' + text)

VALU_LIKE = ('valu', 'trans', 'dot', 'perm', 'rdlane', 'dpp')

def need_states(p, c):
    n = 0
    pv = p.cls in VALU_LIKE
    cv = c.cls in VALU_LIKE
    vg = lambda S: {r for r in S if r[0] in 'va'}
    sg = lambda S: {r for r in S if r[0] == 's'}
    if pv:
        w = vg(p.wr)
        if c.cls == 'mfma' and w & c.rd: n = max(n, 3 if p.cls == 'dot' else 2)
        if c.cls == 'perm' and w & c.rd: n = max(n, 2)
        if c.cls == 'dpp' and w & c.rd: n = max(n, 2)
        if c.cls == 'rdlane' and w & c.rd: n = max(n, 1)
        if p.cls == 'trans' and cv and w & c.rd: n = max(n, 1)
        if p.cls == 'dot' and w & (c.rd | c.wr):
            same = (c.mn == p.mn) and (c.wr == p.wr) and not (w & (c.rd - c.wr))
            if not same: n = max(n, 3)
        ws = sg(p.wr)
        if ws:
            if cv and ws & c.rd: n = max(n, 4 if c.cls == 'rdlane' else 2)
            if c.cls == 'vmem' and ws & c.rd: n = max(n, 5)
            if c.cls == 'salu' and ws & c.rd: n = max(n, 1)
            if ws & set(parse_reg('exec')): n = max(n, 5)
    if p.cls == 'mfma':
        passes = 8 if '32x32x16' in p.mn else 4
        raw = {8: 12, 4: 8}[passes] + 1
        ovl = {8: 10, 4: 6}[passes]
        war = {8: 7, 4: 3}[passes]
        if c.cls == 'mfma':
            if p.wr & c.ab: n = max(n, raw)
            if p.wr & c.srcc and not (p.wr == c.srcc and p.mn == c.mn): n = max(n, ovl)
            if p.wr & c.wr and not (p.wr == c.srcc and p.mn == c.mn): n = max(n, raw)
        elif cv or c.cls in ('ds', 'vmem'):
            if p.wr & (c.rd | c.wr): n = max(n, raw)
            if p.srcc & c.wr: n = max(n, war)
    if p.cls == 'salu' and ('s', 124) in p.wr and c.lds_dma: n = max(n, 1)
    if p.cls == 'vmem' and p.wide_store and (p.data & c.wr): n = max(n, 2)
    return n

class Asm:
    def __init__(self):
        self.lines = []
        self.hist = []
        self.vm = []
        self.lg = []
        self.smem_out = False
        self.nlabel = 0
        self.stats = {}
    def raw(self, text):
        self.lines.append(text)
    def comment(self, t):
        self.lines.append('  ; ' + t)
    def newlabel(self, base='L'):
        self.nlabel += 1
        return f'{base}_{self.nlabel}'
    def label(self, name):
        self.lines.append(name + ':')
    def _emit(self, ins):
        self.lines.append('  ' + ins.text)
        self.hist.append(ins)
        if len(self.hist) > 40: self.hist.pop(0)
        self.stats[ins.cls] = self.stats.get(ins.cls, 0) + 1
    def _wait_vm(self, n):
        n = min(n, 63)
        self._emit(Ins(f's_waitcnt vmcnt({n})'))
        self.vm = [e for e in self.vm if e['after'] < n]
    def _wait_lg(self, n):
        if self.smem_out: n = 0
        n = min(n, 15)
        self._emit(Ins(f's_waitcnt lgkmcnt({n})'))
        self.lg = [e for e in self.lg if e['after'] < n]
        if n == 0: self.smem_out = False
    def wait_vm_tok(self, tok):
        c = [e['after'] for e in self.vm if e['tok'] == tok]
        if c: self._wait_vm(min(c))
    def wait_lg_tok(self, tok):
        c = [e['after'] for e in self.lg if e['tok'] == tok]
        if c: self._wait_lg(min(c))
    def wait_vm_all(self, force=False):
        if self.vm or force: self._wait_vm(0)
    def wait_lg_all(self, force=False):
        if self.lg or force: self._wait_lg(0)
    def snapshot(self):
        return ([dict(e) for e in self.vm], [dict(e) for e in self.lg], self.smem_out)
    def merge(self, snap):
        for q, o in ((self.vm, snap[0]), (self.lg, snap[1])):
            mine = {e['id']: e for e in q}
            for e in o:
                if e['id'] in mine: mine[e['id']]['after'] = min(mine[e['id']]['after'], e['after'])
                else: q.append(dict(e))
            q.sort(key=lambda e: -e['after'])
        self.smem_out |= snap[2]
        self.hazard_fence()
    def restore(self, snap):
        self.vm = [dict(e) for e in snap[0]]; self.lg = [dict(e) for e in snap[1]]; self.smem_out = snap[2]
    def hazard_fence(self):
        self._emit(Ins('s_nop 7')); self._emit(Ins('s_nop 5'))
        self.hist = []
    _id = 0
    def __call__(self, text, tok=None):
        ins = Ins(text)
        touch = ins.rd | ins.wr
        c = [e['after'] for e in self.vm if e['regs'] & touch]
        if c: self._wait_vm(min(c))
        c = [e['after'] for e in self.lg if e['regs'] & touch]
        if c: self._wait_lg(min(c))
        dist = 0; need = 0
        for p in reversed(self.hist):
            n = need_states(p, ins)
            if n > dist: need = max(need, n - dist)
            dist += p.ws
            if dist > 20: break
        while need > 0:
            k = min(need, 8)
            self._emit(Ins(f's_nop {k-1}')); need -= k
        self._emit(ins)
        Asm._id += 1
        if ins.cls == 'vmem':
            for e in self.vm: e['after'] += 1
            self.vm.append(dict(regs=set(ins.wr), tok=tok, after=0, id=Asm._id))
        elif ins.cls == 'ds':
            for e in self.lg: e['after'] += 1
            self.lg.append(dict(regs=set(ins.wr), tok=tok, after=0, id=Asm._id))
        elif ins.cls == 'smem':
            for e in self.lg: e['after'] += 1
            self.lg.append(dict(regs=set(ins.wr), tok=tok, after=0, id=Asm._id))
            self.smem_out = True
        return ins
    def text(self):
        return '\n'.join(self.lines) + '\n'

def v(i, n=1): return f'v{i}' if n == 1 else f'v[{i}:{i+n-1}]'
def a(i, n=1): return f'a{i}' if n == 1 else f'a[{i}:{i+n-1}]'
def s(i, n=1): return f's{i}' if n == 1 else f's[{i}:{i+n-1}]'

def interleave(A, main, fill, per):
    fi = 0
    def emit(x):
        if callable(x): x()
        elif isinstance(x, tuple): A(x[0])
        else: A(x)
    cost = lambda x: x[1] if isinstance(x, tuple) else 1
    for m in main:
        for y in (m if isinstance(m, list) else [m]): emit(y)
        b = per
        while fi < len(fill) and b >= cost(fill[fi]):
            b -= cost(fill[fi]); emit(fill[fi]); fi += 1
    while fi < len(fill):
        emit(fill[fi]); fi += 1
```

```python
import sys
sys.path.insert(0, 'gen')
from asmlib import *
from layout import *
import struct

MF = 'v_mfma_f32_32x32x16_bf16'
ONES = 0x3f803f80
POLL_LIMIT = 300000
def f32(x): return '0x%08x' % struct.unpack('<I', struct.pack('<f', x))[0]
LOG2E = 1.4426950408889634
LN2 = 0.6931471805599453
WS = 's[8:11]'; OUT = 's[12:15]'
sW, sXCD, sIDX, sL = 16, 17, 18, 19
sTTA, sC16, sRB4, sCB, sTTO, sCTO = 20, 21, 22, 23, 24, 25
sSH8, sSH15 = 26, 27
sONES, sLN2, sEPS6 = 28, 29, 30
sT = 32
mK = 's[48:49]'
mZ = 's[50:51]'
sXO, sHO = 52, 53
sCNT = 54
TSB = 60; NS = 16
MISC = 5 * T
vL0, vL4, vPX, vPH, vRR, vP = 1, 2, 3, 4, 5, 6
vt0, vt1, vL1, vL2, vc0, vc1 = 10, 11, 12, 13, 14, 15
vRES = 16
W0 = 24

def gen_main(ts=0, stop=99):
    A = Asm()
    SC = 'sc1'
    def stamp(i):
        if ts: A(f's_memrealtime {s(TSB+2*i,2)}')
    def lds(off):
        return (v((vL0, vL1, vL2)[off >> 16]), off & 0xffff)
    def dsr(dst, off, kind='v'):
        b, o = lds(off)
        return f'ds_read_b128 {kind}[{dst}:{dst+3}], {b} offset:{o}'
    def dsw(src, off):
        b, o = lds(off)
        return f'ds_write_b128 {b}, {v(src,4)} offset:{o}'
    def frag_loads(dsts, sbase, st, sc='', tok=None):
        out = []
        for n, d in enumerate(dsts):
            if n % 4 == 0 and n:
                out.append(f's_add_u32 {s(st)}, {s(sbase)}, {n*KB}')
            so = s(st) if n >= 4 else s(sbase)
            out.append((lambda d=d, so=so, n=n: A(f'buffer_load_dwordx4 {d}, {v(vL0)}, {WS}, {so} offen offset:{(n%4)*KB} {sc}', tok=tok)))
        return out
    def dma(ldsbase, sbase, goff, n, ssh, st, tok):
        out = []
        for i in range(n):
            if i % 4 == 0:
                out.append(f's_add_u32 {s(st)}, {s(sbase)}, {s(ssh)}')
                out.append(f's_add_u32 {s(st)}, {s(st)}, {goff + i*KB}')
                out.append(f's_add_u32 m0, {s(ssh)}, {ldsbase + i*KB}')
            out.append((lambda i=i: A(f'buffer_load_dwordx4 {v(vL0)}, {WS}, {s(st)} offen offset:{(i%4)*KB} lds', tok=tok)))
        return out
    def run(lst):
        for x in lst:
            if callable(x): x()
            elif isinstance(x, tuple): A(x[0])
            else: A(x)
    def poll(voff, soff, x4=False):
        L = A.newlabel('Lpoll'); D = A.newlabel('Lpd')
        A(f's_mov_b32 {s(sCNT)}, 0')
        A.label(L)
        if x4: A(f'buffer_load_dwordx4 {v(vP,4)}, {v(voff)}, {WS}, {s(soff)} offen sc1')
        else:  A(f'buffer_load_dword {v(vP)}, {v(voff)}, {WS}, {s(soff)} offen sc1')
        A(f's_add_u32 {s(sCNT)}, {s(sCNT)}, 1')
        A.wait_vm_all()
        if x4:
            A(f'v_min3_u32 {v(vP)}, {v(vP)}, {v(vP+1)}, {v(vP+2)}')
            A(f'v_min_u32 {v(vP)}, {v(vP)}, {v(vP+3)}')
        A(f'v_cmp_ne_u32 vcc, 0, {v(vP)}')
        A(f's_cmp_gt_u32 {s(sCNT)}, {POLL_LIMIT}')
        A(f's_cbranch_scc1 {D}')
        A('s_cmp_eq_u64 vcc, exec')
        A(f's_cbranch_scc0 {L}')
        A.label(D)
    def flag(soff):
        A(f'v_mov_b32 {v(vt0)}, 1')
        A('s_mov_b64 exec, 1')
        A(f'buffer_store_dword {v(vt0)}, {v(vL4)}, {WS}, {s(soff)} offen {SC}')
        A('s_mov_b64 exec, -1')
    def stat_loads(STR, sbase):
        return [(lambda c=c: A(f'buffer_load_dword {v(STR+c)}, {v(vL4)}, {WS}, {s(sbase)} offen offset:{c*256} sc1')) for c in range(14)]
    def stat_final(STR, M, vm, vve, vr):
        o = []
        for c in range(1, 7): o.append(f'v_add_f32 {v(STR)}, {v(STR)}, {v(STR+c)}')
        for c in range(8, 14): o.append(f'v_add_f32 {v(STR+7)}, {v(STR+7)}, {v(STR+c)}')
        o.append(f'v_add_f32 {v(vm)}, {v(STR)}, {v(STR+7)}')
        o.append(f'v_mov_b32 {v(vve)}, {v(vm)}')
        o.append(f'v_permlane32_swap_b32 {v(vm)}, {v(vve)}')
        o.append(f'v_mul_f32 {v(vm)}, {f32(-1.0/448)}, {v(vm)}')
        o.append(f'v_mul_f32 {v(vve)}, {f32(1.0/448)}, {v(vve)}')
        o.append(f'v_fma_f32 {v(vve)}, -{v(vm)}, {v(vm)}, {v(vve)}')
        o.append(f'v_max_f32 {v(vve)}, 0, {v(vve)}')
        o.append(f'v_add_f32 {v(vve)}, {f32(1e-5)}, {v(vve)}')
        o.append((f'v_rsq_f32 {v(vr)}, {v(vve)}', 2))
        o.append(f'v_cvt_pk_bf16_f32 {v(M)}, {v(vm)}, {v(vm)}')
        o.append(f'v_and_b32 {v(M+1)}, 0xffff0000, {v(M)}')
        o.append(f'v_sub_f32 {v(M+1)}, {v(vm)}, {v(M+1)}')
        o.append(f'v_mov_b32 {v(M+2)}, 0')
        o.append(f'v_mov_b32 {v(M+3)}, 0')
        o.append(f'v_cvt_pk_bf16_f32 {v(M+1)}, {v(M+1)}, {v(M+2)}')
        return o
    def out_stats(P, sbase):
        A(f'v_mov_b32 {v(vt0)}, 0'); A(f'v_mov_b32 {v(vt1)}, 0')
        for d in range(8): A(f'v_dot2c_f32_bf16 {v(vt0)}, {s(sONES)}, {v(P+d)}')
        for d in range(8): A(f'v_dot2c_f32_bf16 {v(vt1)}, {v(P+d)}, {v(P+d)}')
        A(f'v_permlane32_swap_b32 {v(vt0)}, {v(vt1)}')
        A(f'v_add_f32 {v(vt0)}, {v(vt0)}, {v(vt1)}')
        A(f'buffer_store_dword {v(vt0)}, {v(vL4)}, {WS}, {s(sbase)} offen {SC}')
    def phi_ops(acc, j, scale, T0):
        e = T0 + (j % 6) * 2; m = e + 1
        return [f'v_mul_f32 {v(acc+j)}, {v(acc+j)}, {v(scale)}',
                (f'v_exp_f32 {v(e)}, {v(acc+j)} clamp', 2),
                f'v_max_f32 {v(m)}, 0, {v(acc+j)}',
                f'v_fma_f32 {v(m)}, {v(m)}, {s(sLN2)}, {v(vc0)}',
                f'v_add_f32 {v(acc+j)}, {v(m)}, {v(e)}']
    def skew(groups, lag=1):
        out = []
        n = len(groups); L = max(len(g) for g in groups)
        for t in range(n + L):
            for k in range(L):
                i = t - k
                if 0 <= i < n and k < len(groups[i]): out.append(groups[i][k])
        return out

    A('s_cmp_ge_u32 s2, 256')
    A('s_cbranch_scc1 M_end')
    A('s_load_dwordx2 s[4:5], s[0:1], 72')
    A('s_load_dwordx2 s[6:7], s[0:1], 56')
    if ts:
        for i in range(2*NS): A(f's_mov_b32 {s(TSB+i)}, 0')
    stamp(0)
    A(f'v_lshrrev_b32 {v(vt0)}, 6, v0')
    A(f'v_and_b32 {v(vt1)}, 63, v0')
    A(f'v_readfirstlane_b32 {s(sW)}, {v(vt0)}')
    A(f'v_lshlrev_b32 {v(vL0)}, 4, {v(vt1)}')
    A(f'v_lshlrev_b32 {v(vL4)}, 2, {v(vt1)}')
    A(f'v_add_u32 {v(vL1)}, 0x10000, {v(vL0)}')
    A(f'v_add_u32 {v(vL2)}, 0x20000, {v(vL0)}')
    A(f's_and_b32 {s(sXCD)}, s2, 7')
    A(f's_lshr_b32 {s(sIDX)}, s2, 3')
    A(f's_and_b32 {s(sC16)}, {s(sIDX)}, 15')
    A(f's_lshr_b32 {s(sT)}, {s(sIDX)}, 4')
    A(f's_lshl_b32 {s(sT)}, {s(sT)}, 2')
    A(f's_lshl_b32 {s(sT+1)}, {s(sXCD)}, 3')
    A(f's_add_u32 {s(sTTA)}, {s(sT)}, {s(sT+1)}')
    A(f's_add_u32 {s(sTTA)}, {s(sTTA)}, {s(sW)}')
    A(f's_mul_i32 {s(sRB4)}, {s(sIDX)}, 37')
    A(f's_lshr_b32 {s(sRB4)}, {s(sRB4)}, 8')
    A(f's_mul_i32 {s(sT)}, {s(sRB4)}, 7')
    A(f's_sub_u32 {s(sCB)}, {s(sIDX)}, {s(sT)}')
    A(f's_lshl_b32 {s(sT)}, {s(sRB4)}, 1')
    A(f's_add_u32 {s(sTTO)}, {s(sT)}, {s(sT+1)}')
    A(f's_lshr_b32 {s(sT)}, {s(sW)}, 1')
    A(f's_add_u32 {s(sTTO)}, {s(sTTO)}, {s(sT)}')
    A(f's_lshl_b32 {s(sCTO)}, {s(sCB)}, 1')
    A(f's_and_b32 {s(sT)}, {s(sW)}, 1')
    A(f's_add_u32 {s(sCTO)}, {s(sCTO)}, {s(sT)}')
    A(f's_lshl_b32 {s(sSH8)}, {s(sW)}, 3')
    A(f's_min_u32 {s(sSH8)}, {s(sSH8)}, 21')
    A(f's_lshl_b32 {s(sSH8)}, {s(sSH8)}, 10')
    A(f's_mul_i32 {s(sSH15)}, {s(sW)}, 15')
    A(f's_min_u32 {s(sSH15)}, {s(sSH15)}, 43')
    A(f's_lshl_b32 {s(sSH15)}, {s(sSH15)}, 10')
    A(f's_mov_b32 {s(sONES)}, {ONES}')
    A(f's_mov_b32 {s(sLN2)}, {f32(LN2)}')
    A(f's_mov_b32 {s(sL)}, 0')
    A(f's_mov_b32 s48, 0x0fffffff'); A(f's_mov_b32 s49, 0x0fffffff')
    A(f's_mov_b32 s50, 0x10000000'); A(f's_mov_b32 s51, 0x10000000')
    A(f'v_mov_b32 {v(vc0)}, {f32(1e-6)}')
    A(f'v_mov_b32 {v(vc1)}, {ONES}')
    A(f'v_min_u32 {v(vPX)}, 13, {v(vt1)}')
    A(f'v_lshlrev_b32 {v(vPX)}, 2, {v(vPX)}')
    A(f'v_bfe_u32 {v(vPH)}, {v(vt1)}, 2, 1')
    A(f'v_lshlrev_b32 {v(vPH)}, 7, {v(vPH)}')
    A(f'v_and_b32 {v(vt0)}, 3, {v(vt1)}')
    A(f'v_lshl_add_u32 {v(vPH)}, {v(vt0)}, 2, {v(vPH)}')
    A(f'v_lshrrev_b32 {v(vRR)}, 5, {v(vt1)}')
    A(f'v_lshlrev_b32 {v(vRR)}, 4, {v(vRR)}')
    A(f's_lshl_b32 {s(sT)}, {s(sW)}, 8')
    A(f's_add_u32 {s(sT)}, {s(sT)}, {MISC}')
    A(f'v_add_u32 {v(vRR)}, {s(sT)}, {v(vRR)}')
    A(f's_mov_b32 s8, s4'); A(f's_mov_b32 s9, s5'); A(f's_mov_b32 s10, {WS_BYTES}'); A(f's_mov_b32 s11, 0x00020000')
    A(f's_mov_b32 s12, s6'); A(f's_mov_b32 s13, s7'); A(f's_mov_b32 s14, {2048*448*2}'); A(f's_mov_b32 s15, 0x00020000')
    sWQ = 55
    sW13 = 56
    A(f's_mul_i32 {s(sWQ)}, {s(sC16)}, {3*T}')
    A(f's_add_u32 {s(sWQ)}, {s(sWQ)}, {PWQKV}')
    A(f's_mul_i32 {s(sW13)}, {s(sC16)}, {7*T}')
    A(f's_add_u32 {s(sW13)}, {s(sW13)}, {PW13}')
    run(dma(0, sWQ, 0, 15, sSH15, sT, 'wkv'))
    A(f's_mul_i32 {s(sT)}, {s(sTTO)}, {28*KB}')
    A(f's_lshl_b32 {s(sT+1)}, {s(sCTO)}, 11')
    A(f's_add_u32 {s(sT)}, {s(sT)}, {s(sT+1)}')
    A(f's_add_u32 {s(sT)}, {s(sT)}, {XF}')
    A(f'buffer_load_dwordx4 {v(vRES,4)}, {v(vL0)}, {WS}, {s(sT)} offen')
    A(f'buffer_load_dwordx4 {v(vRES+4,4)}, {v(vL0)}, {WS}, {s(sT)} offen offset:1024')
    head_state = A.snapshot()
    A('s_branch M_qkv')

    A.label('M_loop')
    A.vm = []; A.lg = []; A.hazard_fence()
    A(f's_lshl_b32 {s(sT)}, {s(sTTA)}, 7')
    A(f's_add_u32 {s(sT)}, {s(sT)}, {FX + 2*FX_STR}')
    A.wait_vm_all(force=True)
    poll(vPX, sT)
    A.label('M_qkv')
    A.merge(head_state)
    stamp(1)
    X = W0; AK = 136; AV = 152; AQ = 168; WB = 184; STR = 208; M = 208; TMP = 212; RR = 224; RL = 240
    A(f's_mul_i32 {s(sXO)}, {s(sL)}, {2*XF_STR}')
    A(f's_mul_i32 {s(sT)}, {s(sTTA)}, 3584')
    A(f's_mul_i32 {s(sT+1)}, {s(sL)}, {2*ST_STR}')
    A(f's_add_u32 {s(sT)}, {s(sT)}, {s(sT+1)}')
    A(f's_add_u32 {s(sT)}, {s(sT)}, {ST}')
    run(stat_loads(STR, sT))
    A(f's_mul_i32 {s(sT+2)}, {s(sTTA)}, {28*KB}')
    A(f's_add_u32 {s(sT+2)}, {s(sT+2)}, {s(sXO)}')
    A(f's_add_u32 {s(sT+2)}, {s(sT+2)}, {XF}')
    run(frag_loads([v(X+4*t,4) for t in range(28)], sT+2, sT+3, 'sc1'))
    A.wait_vm_tok('wkv')
    A('s_barrier')
    pre = dma(2*T, sWQ, 2*T, 8, sSH8, sT+4, 'wq') + dma(3*T, sW13, 0, 15, sSH15, sT+5, 'w13a')
    vm_, vve_, vr_ = TMP+8, TMP+9, TMP+10
    sf = stat_final(STR, M, vm_, vve_, vr_)
    sf.append(f'v_mul_f32 {v(TMP+11)}, {f32(LOG2E)}, {v(vr_)}')
    vrl_ = TMP+11
    sf.append(f'v_cndmask_b32 {v(vt0)}, {v(vrl_)}, {v(vr_)}, s[58:59]')
    def wr_r():
        A(f'v_add_u32 {v(vt1)}, {s(sT+6)}, {v(vL4)}')
        A(f'ds_write_b32 {v(vt1)}, {v(vt0)}')
        for c in range(4): A(f'ds_read_b128 {v(RL+4*c,4)}, {v(vRR)} offset:{128 + 32*c}')
        for c in range(4): A(f'ds_read_b128 {v(RR+4*c,4)}, {v(vRR)} offset:{32*c}')
    A(f's_lshl_b32 {s(sT+6)}, {s(sW)}, 8')
    A(f's_add_u32 {s(sT+6)}, {s(sT+6)}, {MISC}')
    A('s_mov_b32 s58, -1'); A('s_mov_b32 s59, 0')
    kb = lambda t: WB + 4*(t % 3); vb = lambda t: WB + 12 + 4*(t % 3)
    for t in range(2):
        A(dsr(kb(t), t*KB)); A(dsr(vb(t), T + t*KB))
    main = []
    for t in range(29):
        grp = []
        xa = v(X+4*t,4) if t < 28 else v(M,4)
        if t + 2 < 29: grp.append(dsr(kb(t+2), (t+2)*KB))
        grp.append(f'{MF} {v(AK,16)}, {xa}, {v(kb(t),4)}, {v(AK,16) if t else 0}')
        main.append(grp)
        grp = []
        if t + 2 < 29: grp.append(dsr(vb(t+2), T + (t+2)*KB))
        grp.append(f'{MF} {v(AV,16)}, {xa}, {v(vb(t),4)}, {v(AV,16) if t else 0}')
        main.append(grp)
    interleave(A, main[:56], pre + sf + [wr_r], 2)
    run(main[56]); run(main[57])
    stamp(2)
    A.wait_vm_tok('wq')
    A.wait_lg_all()
    A('s_barrier')
    qb = lambda t: WB + 4*(t % 4)
    for t in range(3): A(dsr(qb(t), 2*T + t*KB))
    mq = []
    for t in range(29):
        grp = []
        xa = v(X+4*t,4) if t < 28 else v(M,4)
        if t + 3 < 29: grp.append(dsr(qb(t+3), 2*T + (t+3)*KB))
        grp.append(f'{MF} {v(AQ,16)}, {v(qb(t),4)}, {xa}, {v(AQ,16) if t else 0}')
        mq.append(grp)
    T2 = TMP
    def phi4(acc, j, scale):
        e = T2 + (j % 4) * 2; m = e + 1
        return [f'v_mul_f32 {v(acc+j)}, {v(acc+j)}, {v(scale)}',
                (f'v_exp_f32 {v(e)}, {v(acc+j)} clamp', 2),
                f'v_max_f32 {v(m)}, 0, {v(acc+j)}',
                f'v_fma_f32 {v(m)}, {v(m)}, {s(sLN2)}, {v(vc0)}',
                f'v_add_f32 {v(acc+j)}, {v(m)}, {v(e)}']
    def chains_pairwise(mk):
        out = []
        for j0 in range(0, 16, 2):
            c0, c1 = mk(j0), mk(j0+1)
            for x, y in zip(c0, c1): out += [x, y]
        return out
    ek = chains_pairwise(lambda j: phi4(AK, j, RL+j))
    for d in range(8): ek.append(f'v_cvt_pk_bf16_f32 {v(AK+d)}, {v(AK+2*d)}, {v(AK+2*d+1)}')
    for d in range(8): ek.append(f'v_cndmask_b32 {v(AK+d)}, 0, {v(AK+d)}, {mK}')
    ev = [f'v_mul_f32 {v(AV+j)}, {v(AV+j)}, {v(RR+j)}' for j in range(16)]
    for d in range(8): ev.append(f'v_cvt_pk_bf16_f32 {v(AV+d)}, {v(AV+2*d)}, {v(AV+2*d+1)}')
    for d in range(8): ev.append(f'v_cndmask_b32 {v(AV+d)}, {v(AV+d)}, {v(vc1)}, {mZ}')
    for g in mq[:3]: run(g)
    interleave(A, mq[3:25], ek + ev, 7)
    KVA = RL
    A(f'{MF} {v(KVA,16)}, {v(AK,4)}, {v(AV,4)}, 0')
    A(f'{MF} {v(KVA,16)}, {v(AK+4,4)}, {v(AV+4,4)}, {v(KVA,16)}')
    for g in mq[25:]: run(g)
    A(f's_lshl_b32 {s(sT)}, {s(sW)}, 12')
    A(f'v_add_u32 {v(vt0)}, {s(sT)}, {v(vL0)}')
    for jq in range(4): A(f'ds_write_b128 {v(vt0)}, {v(KVA+4*jq,4)} offset:{jq*KB}')
    A(f's_lshl_b32 {s(sT)}, {s(sW)}, 10')
    A(f'v_add_u32 {v(vt1)}, {s(sT)}, {v(vL4)}')
    A.wait_lg_all()
    A('s_barrier')
    for n in range(4):
        for w2 in range(4): A(f'ds_read_b32 {v(AK+4*n+w2)}, {v(vt1)} offset:{w2*4096 + n*256}')
    A(f's_lshl_b32 {s(sT+1)}, {s(sC16)}, 12')
    A(f's_add_u32 {s(sT)}, {s(sT)}, {s(sT+1)}')
    A(f's_mul_i32 {s(sT+1)}, {s(sL)}, {KV_STR}')
    A(f's_add_u32 {s(sT)}, {s(sT)}, {s(sT+1)}')
    A(f's_add_u32 {s(sT)}, {s(sT)}, {KV}')
    for n in range(4):
        b = AK + 4*n
        A(f'v_add_f32 {v(b)}, {v(b)}, {v(b+1)}')
        A(f'v_add_f32 {v(b+2)}, {v(b+2)}, {v(b+3)}')
        A(f'v_add_f32 {v(b)}, {v(b)}, {v(b+2)}')
        A(f'buffer_atomic_add_f32 {v(b)}, {v(vL4)}, {WS}, {s(sT)} offen offset:{n*256}')
    stamp(3)
    run(chains_pairwise(lambda j: phi4(AQ, j, vrl_)))
    for d in range(8): A(f'v_cvt_pk_bf16_f32 {v(AQ+d)}, {v(AQ+2*d)}, {v(AQ+2*d+1)}')
    A(f's_lshl_b32 {s(sT)}, {s(sTTA)}, 15')
    A(f's_lshl_b32 {s(sT+1)}, {s(sC16)}, 11')
    A(f's_add_u32 {s(sT)}, {s(sT)}, {s(sT+1)}')
    A(f's_mul_i32 {s(sT+1)}, {s(sL)}, {PQ_STR}')
    A(f's_add_u32 {s(sT)}, {s(sT)}, {s(sT+1)}')
    A(f's_add_u32 {s(sT)}, {s(sT)}, {PQ}')
    A(f'buffer_store_dwordx4 {v(AQ,4)}, {v(vL0)}, {WS}, {s(sT)} offen {SC}')
    A(f'buffer_store_dwordx4 {v(AQ+4,4)}, {v(vL0)}, {WS}, {s(sT)} offen offset:1024 {SC}')
    A(f's_lshl_b32 {s(sT)}, s2, 2')
    A(f's_mul_i32 {s(sT+1)}, {s(sL)}, {FKV_STR}')
    A(f's_add_u32 {s(sT+1)}, {s(sT+1)}, {FKV}')
    A(f's_add_u32 {s(sT)}, {s(sT)}, {s(sT+1)}')
    A.wait_vm_all()
    A('s_barrier')
    A(f's_cmp_lg_u32 {s(sW)}, 0')
    A('s_cbranch_scc1 M_nofkv')
    flag(sT)
    A.label('M_nofkv')
    stamp(4)
    if stop <= 1: A('s_branch M_fin')
    A(f's_cmp_ge_u32 {s(sIDX)}, 28')
    skip_state = A.snapshot()
    A('s_cbranch_scc1 M_up')
    KVR = 24; PQR = 88; NUM = 152; WO1 = 184
    wof = [v(WO1+4*i,4) for i in range(18)] + [a(224+4*i,4) for i in range(8)] + \
          [v(KVR + 16*(i//2) + 8 + 4*(i%2), 4) for i in range(6)]
    A(f's_lshl_b32 {s(sT+2)}, {s(sCTO)}, 15')
    A(f's_add_u32 {s(sT+2)}, {s(sT+2)}, {PWO}')
    wl = frag_loads(wof, sT+2, sT+3)
    cnt = 0; cut = None
    for i, x in enumerate(wl):
        if callable(x):
            if cnt == 26: cut = i; break
            cnt += 1
    run(wl[:cut])
    A(f's_cmp_lg_u32 {s(sL)}, 0')
    st2 = A.snapshot()
    A('s_cbranch_scc1 M_now2')
    for c in range(2):
        A(f's_xor_b32 {s(sT+4)}, {s(sCTO)}, {c}')
        A(f's_mul_i32 {s(sT+4)}, {s(sT+4)}, {112*KB}')
        A(f's_mul_i32 {s(sT+5)}, {s(sW)}, {28*KB}')
        A(f's_add_u32 {s(sT+4)}, {s(sT+4)}, {s(sT+5)}')
        A(f's_add_u32 {s(sT+4)}, {s(sT+4)}, {PW2}')
        run(frag_loads([a((c*28+t)*4,4) for t in range(28)], sT+4, sT+5))
    A.label('M_now2'); A.merge(st2)
    poll(vL0, sT+1, x4=True)
    stamp(5)
    A(f's_lshl_b32 {s(sT)}, {s(sW)}, 14')
    A(f's_mul_i32 {s(sT+1)}, {s(sL)}, {KV_STR}')
    A(f's_add_u32 {s(sT)}, {s(sT)}, {s(sT+1)}')
    A(f's_add_u32 {s(sT)}, {s(sT)}, {KV}')
    A(f's_and_b32 {s(sT+4)}, {s(sTTO)}, -2')
    A(f's_lshl_b32 {s(sT+4)}, {s(sT+4)}, 15')
    A(f's_lshl_b32 {s(sT+5)}, {s(sW)}, 13')
    A(f's_add_u32 {s(sT+4)}, {s(sT+4)}, {s(sT+5)}')
    A(f's_mul_i32 {s(sT+5)}, {s(sL)}, {PQ_STR}')
    A(f's_add_u32 {s(sT+4)}, {s(sT+4)}, {s(sT+5)}')
    A(f's_add_u32 {s(sT+4)}, {s(sT+4)}, {PQ}')
    A(f's_add_u32 {s(sT+5)}, {s(sT+4)}, {32*KB}')
    pqr = lambda hh, tt, u: PQR + ((hh*2 + tt)*2 + u)*4
    for hh in range(4):
        if hh: A(f's_add_u32 {s(sT)}, {s(sT)}, 4096')
        for jq in range(4):
            A(f'buffer_load_dwordx4 {v(KVR+16*hh+4*jq,4)}, {v(vL0)}, {WS}, {s(sT)} offen offset:{jq*KB} sc1')
        if hh == 2:
            A(f's_add_u32 {s(sT+4)}, {s(sT+4)}, 4096'); A(f's_add_u32 {s(sT+5)}, {s(sT+5)}, 4096')
        for tt in range(2):
            for u in range(2):
                A(f'buffer_load_dwordx4 {v(pqr(hh,tt,u),4)}, {v(vL0)}, {WS}, {s(sT+4+tt)} offen offset:{((hh%2)*2+u)*KB} sc1')
    A(f's_lshl_b32 {s(sT)}, {s(sW)}, 13')
    A(f'v_add_u32 {v(vP)}, {s(sT)}, {v(vL0)}')
    def num_mfma(hh, tt):
        N = NUM + 16*tt
        return [f'{MF} {v(N,16)}, {v(KVR+16*hh,4)}, {v(pqr(hh,tt,0),4)}, 0',
                f'{MF} {v(N,16)}, {v(KVR+16*hh+4,4)}, {v(pqr(hh,tt,1),4)}, {v(N,16)}']
    def o_ops(hh, tt):
        N = NUM + 16*tt; P = pqr(hh, tt, 0); d0 = vt0 if tt == 0 else vP+1; d1 = vt1 if tt == 0 else vP+2
        o = [f'v_add_f32 {v(d0)}, {v(vc0)}, {v(N+12)}',
             f'v_rcp_f32 {v(d0)}, {v(d0)}',
             f'v_mov_b32 {v(d1)}, {v(d0)}',
             f'v_permlane32_swap_b32 {v(d0)}, {v(d1)}']
        for j in range(16): o.append(f'v_mul_f32 {v(N+j)}, {v(N+j)}, {v(d1)}')
        for d in range(8): o.append(f'v_cvt_pk_bf16_f32 {v(P+d)}, {v(N+2*d)}, {v(N+2*d+1)}')
        for u in range(2): o.append(f'ds_write_b128 {v(vP)}, {v(P+4*u,4)} offset:{tt*32*KB + (hh*2+u)*KB}')
        return o
    def kv_cvt(hh):
        return [f'v_cvt_pk_bf16_f32 {v(KVR+16*hh+d)}, {v(KVR+16*hh+2*d)}, {v(KVR+16*hh+2*d+1)}' for d in range(8)]
    rest = wl[cut:]
    run(kv_cvt(0)); run(num_mfma(0, 0)); run(num_mfma(0, 1))
    for hh in range(4):
        if hh < 3: run(kv_cvt(hh+1))
        if hh == 2: run(rest)
        run(o_ops(hh, 0))
        if hh < 3: run(num_mfma(hh+1, 0))
        run(o_ops(hh, 1))
        if hh < 3: run(num_mfma(hh+1, 1))
    ACC = NUM
    for d in range(8):
        A(f'v_lshlrev_b32 {v(ACC+2*d)}, 16, {v(vRES+d)}')
        A(f'v_and_b32 {v(ACC+2*d+1)}, 0xffff0000, {v(vRES+d)}')
    A(f's_lshr_b32 {s(sT)}, {s(sW)}, 1')
    A(f's_lshl_b32 {s(sT)}, {s(sT)}, 15')
    A(f'v_add_u32 {v(vP)}, {s(sT)}, {v(vL0)}')
    A.wait_lg_all()
    A('s_barrier')
    stamp(6)
    ob = lambda i: PQR + 4*(i % 6)
    for i in range(4): A(f'ds_read_b128 {v(ob(i),4)}, {v(vP)} offset:{i*KB}')
    for i in range(32):
        if i + 4 < 32: A(f'ds_read_b128 {v(ob(i+4),4)}, {v(vP)} offset:{(i+4)*KB}')
        A(f'{MF} {v(ACC,16)}, {wof[i]}, {v(ob(i),4)}, {v(ACC,16)}')
    def tile_out(xn_expr_sgpr):
        A(f's_mul_i32 {s(sT)}, {s(sTTO)}, {28*KB}')
        A(f's_lshl_b32 {s(sT+1)}, {s(sCTO)}, 11')
        A(f's_add_u32 {s(sT)}, {s(sT)}, {s(sT+1)}')
        A(f's_mul_i32 {s(sT+1)}, {s(xn_expr_sgpr)}, {XF_STR}')
        A(f's_add_u32 {s(sT)}, {s(sT)}, {s(sT+1)}')
        A(f's_add_u32 {s(sT)}, {s(sT)}, {XF}')
        A(f's_mul_i32 {s(sT+1)}, {s(sTTO)}, 3584')
        A(f's_lshl_b32 {s(sT+2)}, {s(sCTO)}, 8')
        A(f's_add_u32 {s(sT+1)}, {s(sT+1)}, {s(sT+2)}')
        A(f's_mul_i32 {s(sT+2)}, {s(xn_expr_sgpr)}, {ST_STR}')
        A(f's_add_u32 {s(sT+1)}, {s(sT+1)}, {s(sT+2)}')
        A(f's_add_u32 {s(sT+1)}, {s(sT+1)}, {ST}')
        A(f's_lshl_b32 {s(sT+2)}, {s(sTTO)}, 7')
        A(f's_lshl_b32 {s(sT+3)}, {s(sCTO)}, 2')
        A(f's_add_u32 {s(sT+2)}, {s(sT+2)}, {s(sT+3)}')
        A(f's_mul_i32 {s(sT+3)}, {s(xn_expr_sgpr)}, {FX_STR}')
        A(f's_add_u32 {s(sT+2)}, {s(sT+2)}, {s(sT+3)}')
        A(f's_add_u32 {s(sT+2)}, {s(sT+2)}, {FX}')
    def tile_store(ACC):
        for d in range(8): A(f'v_cvt_pk_bf16_f32 {v(vRES+d)}, {v(ACC+2*d)}, {v(ACC+2*d+1)}')
        A(f'buffer_store_dwordx4 {v(vRES,4)}, {v(vL0)}, {WS}, {s(sT)} offen {SC}')
        A(f'buffer_store_dwordx4 {v(vRES+4,4)}, {v(vL0)}, {WS}, {s(sT)} offen offset:1024 {SC}')
        out_stats(vRES, sT+1)
        A.wait_vm_all()
        flag(sT+2)
    A(f's_lshl_b32 {s(sT+7)}, {s(sL)}, 1')
    A(f's_add_u32 {s(sT+7)}, {s(sT+7)}, 1')
    tile_out(sT+7)
    tile_store(ACC)
    stamp(7)
    A.label('M_up'); A.merge(skip_state)
    if stop <= 2: A('s_branch M_fin')
    A.wait_lg_all(force=True)
    A('s_barrier')
    A(f's_lshl_b32 {s(sT)}, {s(sTTA)}, 7')
    A(f's_mul_i32 {s(sT+1)}, {s(sL)}, {2*FX_STR}')
    A(f's_add_u32 {s(sT)}, {s(sT)}, {s(sT+1)}')
    A(f's_add_u32 {s(sT)}, {s(sT)}, {FX + FX_STR}')
    run(dma(0, sW13, 2*T, 8, sSH8, sT+4, 't2'))
    poll(vPX, sT)
    stamp(8)
    UA = [136, 152, 168]; HO = 224
    A(f's_mul_i32 {s(sT)}, {s(sTTA)}, 3584')
    A(f's_mul_i32 {s(sT+1)}, {s(sL)}, {2*ST_STR}')
    A(f's_add_u32 {s(sT)}, {s(sT)}, {s(sT+1)}')
    A(f's_add_u32 {s(sT)}, {s(sT)}, {ST + ST_STR}')
    run(stat_loads(STR, sT))
    A(f's_mul_i32 {s(sT+2)}, {s(sTTA)}, {28*KB}')
    A(f's_add_u32 {s(sT+2)}, {s(sT+2)}, {s(sXO)}')
    A(f's_add_u32 {s(sT+2)}, {s(sT+2)}, {XF + XF_STR}')
    run(frag_loads([v(X+4*t,4) for t in range(28)], sT+2, sT+3, 'sc1'))
    A(f's_mul_i32 {s(sHO)}, {s(sTTA)}, {112*KB}')
    A(f's_mul_i32 {s(sT)}, {s(sC16)}, {7*KB}')
    A(f's_add_u32 {s(sHO)}, {s(sHO)}, {s(sT)}')
    A(f's_mul_i32 {s(sT)}, {s(sL)}, {HB_STR}')
    A(f's_add_u32 {s(sHO)}, {s(sHO)}, {s(sT)}')
    A(f's_add_u32 {s(sHO)}, {s(sHO)}, {HB}')
    A(f's_add_u32 {s(sT+8)}, {s(sHO)}, 4096')
    slot = [3*T, 4*T, 0, T, 2*T, 3*T, 4*T]
    vnrl = TMP+11
    sf = stat_final(STR, M, vm_, vve_, vr_)
    sf.append(f'v_mul_f32 {v(vnrl)}, {f32(-LOG2E)}, {v(vr_)}')
    def silu_ops(p):
        acc = UA[p % 3]; H = HO + 4*(p % 4)
        def ch(j):
            e = T2 + (j % 4)*2; q = e + 1
            return [f'v_mul_f32 {v(e)}, {v(acc+j)}, {v(vnrl)}',
                    f'v_mul_f32 {v(q)}, {v(acc+j)}, {v(acc+8+j)}',
                    (f'v_exp_f32 {v(e)}, {v(e)}', 2),
                    f'v_fma_f32 {v(e)}, {v(e)}, {v(vve_)}, {v(vve_)}',
                    (f'v_rcp_f32 {v(e)}, {v(e)}', 2),
                    f'v_mul_f32 {v(acc+j)}, {v(q)}, {v(e)}']
        o = []
        for j0 in range(0, 8, 2):
            for x, y in zip(ch(j0), ch(j0+1)): o += [x, y]
        for d in range(4): o.append(f'v_cvt_pk_bf16_f32 {v(H+d)}, {v(acc+2*d)}, {v(acc+2*d+1)}')
        so = s(sHO) if p < 4 else s(sT+8)
        o.append(f'buffer_store_dwordx4 {v(H,4)}, {v(vL0)}, {WS}, {so} offen offset:{(p%4)*KB} {SC}')
        return o
    seq = []
    for t in range(29): seq += [(0, t), (1, t)]
    for p in range(2, 7): seq += [(p, t) for t in range(29)]
    AHEAD = 4
    ub = lambda i: WB + 4*(i % 6)
    rd = lambda i: dsr(ub(i), slot[seq[i][0]] + seq[i][1]*KB)
    for i in range(AHEAD): A(rd(i))
    def mstep(i):
        p, t = seq[i]
        g = []
        if i + AHEAD < len(seq): g.append(rd(i + AHEAD))
        xa = v(X+4*t,4) if t < 28 else v(M,4)
        acc = v(UA[p % 3],16)
        g.append(f'{MF} {acc}, {v(ub(i),4)}, {xa}, {acc if t else 0}')
        return g
    def sync_tile(tok):
        def f():
            A.wait_vm_tok(tok); A('s_barrier')
        return f
    pre = dma(T, sW13, 3*T, 8, sSH8, sT+4, 't3') + dma(2*T, sW13, 4*T, 8, sSH8, sT+5, 't4')
    interleave(A, [mstep(i) for i in range(0, 50)], pre + sf, 2)
    sync_tile('t2')()
    for i in range(50, 58 + 6): run(mstep(i))
    def refill():
        A.wait_vm_tok('t3'); A('s_barrier')
    refill()
    pos = 64
    fill = dma(3*T, sW13, 5*T, 8, sSH8, sT+4, 't5') + silu_ops(0) + dma(4*T, sW13, 6*T, 8, sSH8, sT+5, 't6')
    interleave(A, [mstep(i) for i in range(pos, 87)], fill, 5)
    def pass_(p, fill, tok_next):
        b = 58 + (p-2)*29
        for i in range(b, b+4): run(mstep(i))
        half = len(fill)//2
        interleave(A, [mstep(i) for i in range(b+4, b+18)], fill[:half], 5)
        if tok_next: sync_tile(tok_next)()
        interleave(A, [mstep(i) for i in range(b+18, b+29)], fill[half:], 5)
    pass_(3, silu_ops(1) + silu_ops(2), 't4')
    pass_(4, silu_ops(3), 't5')
    pass_(5, silu_ops(4), 't6')
    pass_(6, silu_ops(5), None)
    run(silu_ops(6))
    A(f's_lshl_b32 {s(sT)}, {s(sTTA)}, 7')
    A(f's_lshl_b32 {s(sT+1)}, {s(sC16)}, 2')
    A(f's_add_u32 {s(sT)}, {s(sT)}, {s(sT+1)}')
    A(f's_mul_i32 {s(sT+1)}, {s(sL)}, {FH_STR}')
    A(f's_add_u32 {s(sT)}, {s(sT)}, {s(sT+1)}')
    A(f's_add_u32 {s(sT)}, {s(sT)}, {FH}')
    A.wait_vm_all()
    flag(sT)
    stamp(9)
    if stop <= 3: A('s_branch M_fin')
    A.wait_lg_all(force=True)
    A('s_barrier')
    A(f's_cmp_lg_u32 {s(sL)}, 0')
    st3 = A.snapshot()
    A('s_cbranch_scc1 M_nowkv')
    run(dma(0, sWQ, 0, 15, sSH15, sT, 'wkv'))
    A.label('M_nowkv'); A.merge(st3)
    A(f's_cmp_ge_u32 {s(sIDX)}, 28')
    A('s_cbranch_scc1 M_next')
    DA = 24; HW = 88; NW = 42
    A(f's_and_b32 {s(sT)}, {s(sTTO)}, -2')
    A(f's_lshl_b32 {s(sT)}, {s(sT)}, 7')
    A(f's_lshl_b32 {s(sT+1)}, {s(sW)}, 4')
    A(f's_add_u32 {s(sT)}, {s(sT)}, {s(sT+1)}')
    A(f's_mul_i32 {s(sT+1)}, {s(sL)}, {FH_STR}')
    A(f's_add_u32 {s(sT)}, {s(sT)}, {s(sT+1)}')
    A(f's_add_u32 {s(sT)}, {s(sT)}, {FH}')
    acc = lambda tt, c: DA + (tt*2 + c)*16
    for d in range(8):
        A(f'v_lshlrev_b32 {v(acc(0,0)+2*d)}, 16, {v(vRES+d)}')
        A(f'v_and_b32 {v(acc(0,0)+2*d+1)}, 0xffff0000, {v(vRES+d)}')
    for tt in range(2):
        A(f's_xor_b32 {s(sT+2+tt)}, {s(sTTO)}, {tt}')
        A(f's_mul_i32 {s(sT+2+tt)}, {s(sT+2+tt)}, {112*KB}')
        A(f's_mul_i32 {s(sT+4)}, {s(sW)}, {28*KB}')
        A(f's_add_u32 {s(sT+2+tt)}, {s(sT+2+tt)}, {s(sT+4)}')
        A(f's_mul_i32 {s(sT+4)}, {s(sL)}, {HB_STR}')
        A(f's_add_u32 {s(sT+2+tt)}, {s(sT+2+tt)}, {s(sT+4)}')
        A(f's_add_u32 {s(sT+2+tt)}, {s(sT+2+tt)}, {HB}')
    poll(vPH, sT)
    stamp(10)
    hreg = lambda i: HW + 4*(i % NW)
    hl = frag_loads([v(hreg(i),4) for i in range(28)], sT+3, sT+4, 'sc1') + \
         frag_loads([v(hreg(28+i),4) for i in range(28)], sT+2, sT+5, 'sc1')
    groups = []; cur = []
    for x in hl:
        cur.append(x)
        if callable(x): groups.append(cur); cur = []
    for i in range(NW): run(groups[i])
    RB = 3*T
    def red_addr(x, dstv):
        A(f's_xor_b32 {s(sT+6)}, {s(sW)}, {x}')
        A(f's_mul_i32 {s(sT+6)}, {s(sT+6)}, {12*KB}')
        A(f's_add_u32 {s(sT+6)}, {s(sT+6)}, {RB + (x-1)*4*KB}')
        A(f'v_add_u32 {v(dstv)}, {s(sT+6)}, {v(vL0)}')
    red_addr(1, vP); red_addr(2, vP+1); red_addr(3, vP+2)
    A(f's_mul_i32 {s(sT+6)}, {s(sW)}, {12*KB}')
    A(f's_add_u32 {s(sT+6)}, {s(sT+6)}, {RB}')
    A(f'v_add_u32 {v(vP+3)}, {s(sT+6)}, {v(vL0)}')
    early = [f'ds_write_b128 {v(vP+1+c)}, {v(acc(1,c)+4*q,4)} offset:{q*KB}' for c in range(2) for q in range(4)]
    for i in range(56):
        tt = 1 if i < 28 else 0; t = i % 28
        for c in range(2):
            first = (t == 0) and not (tt == 0 and c == 0)
            A(f'{MF} {v(acc(tt,c),16)}, {a((c*28+t)*4,4)}, {v(hreg(i),4)}, {0 if first else v(acc(tt,c),16)}')
        if i + NW < 56: run(groups[i + NW])
        if 36 <= i < 36 + len(early): A(early[i-36])
    for q in range(4): A(f'ds_write_b128 {v(vP)}, {v(acc(0,1)+4*q,4)} offset:{q*KB}')
    A.wait_lg_all()
    A('s_barrier')
    stamp(11)
    RD = HW
    for x in (1, 2, 0):
        for q in range(4): A(f'ds_read_b128 {v(RD+16*x+4*q,4)}, {v(vP+3)} offset:{x*4*KB + q*KB}')
    A(f's_mov_b32 {s(sT+7)}, 2')
    tile_out(sT+7)
    A0 = acc(0,0)
    for x in (1, 2, 0):
        for j in range(0, 16, 2):
            A(f'v_pk_add_f32 {v(A0+j,2)}, {v(A0+j,2)}, {v(RD+16*x+j,2)}')
    A(f's_cmp_lg_u32 {s(sL)}, 0')
    A('s_cbranch_scc1 M_final')
    st4 = A.snapshot()
    tile_store(A0)
    stamp(12)
    A.label('M_next'); A.vm = []; A.lg = []; A.hazard_fence()
    def dump_ts():
        if not ts: return
        A.wait_lg_all(force=True)
        A(f's_lshl_b32 {s(sT)}, s2, 2')
        A(f's_add_u32 {s(sT)}, {s(sT)}, {s(sW)}')
        A(f's_lshl_b32 {s(sT)}, {s(sT)}, 1')
        A(f's_add_u32 {s(sT)}, {s(sT)}, {s(sL)}')
        A(f's_mul_i32 {s(sT)}, {s(sT)}, {NS*4}')
        A(f's_add_u32 {s(sT)}, {s(sT)}, {TS}')
        A('s_mov_b64 exec, 1')
        for i in range(NS):
            A(f'v_mov_b32 {v(W0+i)}, {s(TSB+2*i)}')
            A(f'buffer_store_dword {v(W0+i)}, {v(vL4)}, {WS}, {s(sT)} offen offset:{4*i}')
        A('s_mov_b64 exec, -1')
    A(f's_cmp_lg_u32 {s(sL)}, 0')
    A('s_cbranch_scc1 M_fin')
    dump_ts()
    A(f's_mov_b32 {s(sL)}, 1')
    if stop <= 4: A('s_branch M_end')
    A('s_branch M_loop')
    A.label('M_final'); A.restore(st4); A.hazard_fence()
    for d in range(8): A(f'v_cvt_pk_bf16_f32 {v(vRES+d)}, {v(A0+2*d)}, {v(A0+2*d+1)}')
    A(f'v_and_b32 {v(vt0)}, 31, v0')
    A(f'v_mul_u32_u24 {v(vt0)}, 896, {v(vt0)}')
    A(f'v_bfe_u32 {v(vt1)}, v0, 5, 1')
    A(f'v_lshl_add_u32 {v(vt0)}, {v(vt1)}, 4, {v(vt0)}')
    A(f's_mul_i32 {s(sT)}, {s(sTTO)}, {28*KB}')
    A(f's_lshl_b32 {s(sT+1)}, {s(sCTO)}, 6')
    A(f's_add_u32 {s(sT)}, {s(sT)}, {s(sT+1)}')
    for u in range(2):
        A(f'v_permlane32_swap_b32 {v(vRES+4*u)}, {v(vRES+4*u+2)}')
        A(f'v_permlane32_swap_b32 {v(vRES+4*u+1)}, {v(vRES+4*u+3)}')
        A(f'buffer_store_dwordx4 {v(vRES+4*u,4)}, {v(vt0)}, {OUT}, {s(sT)} offen offset:{32*u}')
    stamp(12)
    A.label('M_fin'); A.vm = []; A.lg = []; A.hazard_fence()
    dump_ts()
    A.label('M_end')
    A('s_endpgm')
    return A
```

```python
KB = 1024
T = 29 * KB
PWQKV = 0x000000
PW13  = 0x200000
PWO   = 0x600000
PW2   = 0x700000
XF    = 0x1000000; XF_STR = 0x200000
ST    = 0x1800000; ST_STR = 0x40000
PQ    = 0x1A00000; PQ_STR = 0x200000
HB    = 0x2000000; HB_STR = 0x800000
ZR    = 0x3000000
KV    = ZR;        KV_STR = 0x10000
FX    = ZR + 0x20000; FX_STR = 0x2000
FH    = ZR + 0x28000; FH_STR = 0x2000
FKV   = ZR + 0x2C000; FKV_STR = 0x400
ZR_BYTES = 0x30000
TS    = 0x3100000
WS_BYTES = 0x10000000
```

```python
import sys
sys.path.insert(0, 'gen')
from asmlib import *
from layout import *

NAME = 'interleave_layers__linear_attn_block__glu_gated_swiglu__prompt'
MF = 'v_mfma_f32_32x32x16_bf16'
LOG2E = 0x3fb8aa3b
LN2 = 0x3f317218
ONES = 0x3f803f80
POLL_LIMIT = 400000

def f32(x):
    import struct
    return '0x%08x' % struct.unpack('<I', struct.pack('<f', x))[0]

def srd(A, d, ptr, nbytes):
    A(f's_mov_b32 {s(d)}, {s(ptr)}')
    A(f's_mov_b32 {s(d+1)}, {s(ptr+1)}')
    A(f's_mov_b32 {s(d+2)}, {nbytes}')
    A(f's_mov_b32 {s(d+3)}, 0x00020000')

def gen_pack():
    A = Asm()
    NWG = 310
    A(f's_cmp_ge_u32 s2, {NWG}')
    A('s_cbranch_scc1 P_end')
    A('s_load_dwordx4 s[52:55], s[0:1], 0')
    A('s_load_dwordx2 s[56:57], s[0:1], 16')
    A('s_load_dwordx4 s[60:63], s[0:1], 32')
    A('s_load_dwordx2 s[64:65], s[0:1], 48')
    A('s_load_dwordx2 s[66:67], s[0:1], 72')
    A('v_lshrrev_b32 v2, 6, v0')
    A('v_and_b32 v3, 63, v0')
    A('v_readfirstlane_b32 s16, v2')
    A('v_lshlrev_b32 v1, 4, v3')
    A('v_and_b32 v4, 31, v3')
    A('v_lshrrev_b32 v5, 5, v3')
    srd(A, 8, 66, WS_BYTES)
    A('s_cmp_ge_u32 s2, 246')
    A('s_cbranch_scc1 P_x')
    A('v_mov_b32 v10, -1')
    A('v_mov_b32 v11, -1')
    A('s_mov_b32 s34, 14')
    A('s_mov_b32 s35, 1')
    A('s_cmp_ge_u32 s2, 64')
    A('s_cbranch_scc1 P_not_qkv')
    A('s_and_b32 s30, s2, 3')
    A('s_lshr_b32 s31, s2, 2')
    A('s_cmp_eq_u32 s30, 3')
    A('s_cbranch_scc1 P_zero')
    srd(A, 20, 54, 448*1344*2)
    srd(A, 24, 54, 448*1344*2)
    A('s_mov_b32 s32, 2688')
    A('s_mul_i32 s33, s32, 32')
    A('s_add_u32 s36, s30, 1')
    A('s_cmp_eq_u32 s30, 2')
    A('s_cselect_b32 s36, 0, s36')
    A('s_mul_i32 s36, s36, 896')
    A('s_mul_i32 s37, s31, 56')
    A('s_add_u32 s36, s36, s37')
    A('s_add_u32 s37, s36, 32')
    A('s_mul_i32 s38, s31, 3')
    A('s_add_u32 s38, s38, s30')
    A(f's_mul_i32 s38, s38, {T}')
    A(f's_add_u32 s38, s38, {PWQKV}')
    A('v_cmp_gt_u32 vcc, 28, v4')
    A('v_cndmask_b32 v10, 0, v10, vcc')
    A('v_mov_b32 v11, v10')
    A('s_branch P_go')
    A.label('P_not_qkv'); A.hazard_fence()
    A('s_cmp_ge_u32 s2, 176')
    A('s_cbranch_scc1 P_not_w13')
    A('s_sub_u32 s30, s2, 64')
    srd(A, 20, 60, 448*1792*2)
    srd(A, 24, 62, 448*1792*2)
    A('s_mov_b32 s32, 3584')
    A('s_mul_i32 s33, s32, 32')
    A('s_lshl_b32 s36, s30, 5')
    A('s_mov_b32 s37, s36')
    A(f's_mul_i32 s38, s30, {T}')
    A(f's_add_u32 s38, s38, {PW13}')
    A('s_branch P_go')
    A.label('P_not_w13'); A.hazard_fence()
    A('s_mov_b32 s35, 0')
    A('s_mov_b32 s32, 896')
    A('s_cmp_ge_u32 s2, 190')
    A('s_cbranch_scc1 P_w2')
    A('s_sub_u32 s30, s2, 176')
    srd(A, 20, 56, 448*448*2)
    srd(A, 24, 56, 448*448*2)
    A('s_mov_b32 s33, %d' % (28*896))
    A('s_mov_b32 s34, 16')
    A('s_lshl_b32 s36, s30, 6')
    A('s_add_u32 s37, s36, 32')
    A('s_lshl_b32 s38, s30, 15')
    A(f's_add_u32 s38, s38, {PWO}')
    A('v_cmp_eq_u32 vcc, 0, v5')
    A('v_cndmask_b32 v11, 0, v11, vcc')
    A('s_branch P_go')
    A.label('P_w2'); A.hazard_fence()
    A('s_sub_u32 s30, s2, 190')
    A('s_lshr_b32 s31, s30, 2')
    A('s_and_b32 s30, s30, 3')
    srd(A, 20, 64, 1792*448*2)
    srd(A, 24, 64, 1792*448*2)
    A('s_mov_b32 s33, %d' % (32*896))
    A('s_mul_i32 s36, s30, %d' % (448*896))
    A('s_lshl_b32 s37, s31, 6')
    A('s_add_u32 s36, s36, s37')
    A('s_add_u32 s37, s36, 32')
    A('s_mul_i32 s38, s31, %d' % (112*KB))
    A('s_mul_i32 s39, s30, %d' % (28*KB))
    A('s_add_u32 s38, s38, s39')
    A(f's_add_u32 s38, s38, {PW2}')
    A.label('P_go'); A.hazard_fence()
    A('v_lshrrev_b32 v6, 1, v3')
    A('v_mul_lo_u32 v6, v6, s32')
    A('v_and_b32 v7, 1, v3')
    A('v_lshlrev_b32 v7, 4, v7')
    A('v_add_u32 v6, v6, v7')
    A('v_bfe_u32 v7, v3, 4, 1')
    A('v_lshlrev_b32 v7, 10, v7')
    A('v_bfe_u32 v8, v3, 2, 2')
    A('v_lshl_add_u32 v8, v5, 2, v8')
    A('v_lshl_add_u32 v7, v8, 5, v7')
    A('v_and_b32 v8, 3, v3')
    A('v_lshl_add_u32 v7, v8, 3, v7')
    A('s_lshl_b32 s40, s16, 13')
    A('v_add_u32 v7, s40, v7')
    A('v_mov_b32 v12, 0')
    A(f's_mov_b32 s41, {ONES}')
    for n in range(4):
        A(f's_add_u32 s42, s16, {4*n}')
        A('s_mul_i32 s43, s42, s33')
        A('s_add_u32 s44, s43, s36')
        A('s_add_u32 s45, s43, s37')
        A(f's_add_u32 s46, s40, {n*2048}')
        A('s_mov_b32 m0, s46')
        A('buffer_load_dwordx4 v6, s[20:23], s44 offen lds', tok=('d', n))
        A(f's_add_u32 s46, s40, {n*2048+1024}')
        A('s_mov_b32 m0, s46')
        A('buffer_load_dwordx4 v6, s[24:27], s45 offen lds', tok=('d', n))
    for n in range(4):
        A(f's_add_u32 s42, s16, {4*n}')
        if n == 3:
            A('s_cmp_ge_u32 s42, s34')
            A('s_cbranch_scc1 P_cs')
        A.wait_vm_tok(('d', n))
        b = 16 + 8*n
        for u in range(2):
            for p in range(2):
                A(f'ds_read_b64_tr_b16 {v(b+4*u+2*p,2)}, v7 offset:{n*2048+u*512+p*256}')
        for d in range(8):
            A(f'v_and_b32 {v(b+d)}, {v(b+d)}, {"v11" if d >= 6 else "v10"}')
        A('s_lshl_b32 s43, s42, 11')
        A('s_add_u32 s43, s43, s38')
        A(f'buffer_store_dwordx4 {v(b,4)}, v1, s[8:11], s43 offen')
        A(f'buffer_store_dwordx4 {v(b+4,4)}, v1, s[8:11], s43 offen offset:1024')
        for d in range(8):
            A(f'v_dot2c_f32_bf16 v12, s41, {v(b+d)}')
    A.label('P_cs'); A.hazard_fence()
    A('s_cmp_eq_u32 s35, 0')
    A('s_cbranch_scc1 P_end')
    A('v_lshlrev_b32 v13, 2, v0')
    A('ds_write_b32 v13, v12 offset:32768')
    A.wait_lg_all()
    A('s_barrier')
    A('s_cmp_lg_u32 s16, 0')
    A('s_cbranch_scc1 P_end')
    A('v_lshlrev_b32 v13, 2, v4')
    for q in range(8):
        A(f'ds_read_b32 {v(48+q)}, v13 offset:{32768 + q*128}')
    for q in range(1, 8):
        A(f'v_add_f32 v48, v48, {v(48+q)}')
    A('v_cvt_pk_bf16_f32 v49, v48, v48')
    A('v_and_b32 v50, 0xffff0000, v49')
    A('v_sub_f32 v50, v48, v50')
    A('v_cvt_pk_bf16_f32 v52, v48, v50')
    A('v_and_b32 v53, 0xffff, v49')
    A('v_mov_b32 v54, 0')
    A('v_mov_b32 v55, 0')
    A('v_cmp_eq_u32 vcc, 0, v5')
    A('v_cndmask_b32 v52, 0, v52, vcc')
    A('v_cndmask_b32 v53, 0, v53, vcc')
    A(f's_add_u32 s43, s38, {28*KB}')
    A('buffer_store_dwordx4 v[52:55], v1, s[8:11], s43 offen')
    A('s_branch P_end')
    A.label('P_zero'); A.hazard_fence(); A.vm = []; A.lg = []
    for d in range(4): A(f'v_mov_b32 {v(16+d)}, 0')
    A('v_lshlrev_b32 v6, 4, v0')
    A('s_mul_i32 s43, s31, %d' % (ZR_BYTES // 16))
    A(f's_add_u32 s43, s43, {ZR}')
    for n in range(ZR_BYTES // 16 // 4096):
        A('buffer_store_dwordx4 v[16:19], v6, s[8:11], s43 offen')
        A('s_add_u32 s43, s43, 4096')
    A('s_branch P_end')
    A.label('P_x'); A.hazard_fence(); A.vm = []; A.lg = []
    A('s_sub_u32 s30, s2, 246')
    srd(A, 20, 52, 2048*448*2)
    A('v_mul_u32_u24 v6, 896, v4')
    A('v_lshl_add_u32 v6, v5, 4, v6')
    A('s_mul_i32 s31, s30, %d' % (28*KB))
    A('s_mul_i32 s32, s16, %d' % (7*32))
    A('s_add_u32 s32, s32, s31')
    for t in range(7):
        A(f'buffer_load_dwordx4 {v(16+4*t,4)}, v6, s[20:23], s32 offen offset:{32*t}')
    A('s_mul_i32 s33, s16, %d' % (7*KB))
    A('s_add_u32 s33, s33, s31')
    A(f's_add_u32 s33, s33, {XF}')
    A(f's_mov_b32 s41, {ONES}')
    A('v_mov_b32 v12, 0'); A('v_mov_b32 v13, 0'); A('v_mov_b32 v14, 0')
    for t in range(7):
        b = 16 + 4*t
        A(f'v_permlane32_swap_b32 {v(b)}, {v(b+2)}')
        A(f'v_permlane32_swap_b32 {v(b+1)}, {v(b+3)}')
        if t == 4: A('s_add_u32 s33, s33, 4096')
        A(f'buffer_store_dwordx4 {v(b,4)}, v1, s[8:11], s33 offen offset:{(t%4)*1024}')
        for d in range(4):
            A(f'v_dot2c_f32_bf16 v12, s41, {v(b+d)}')
        for d in range(4):
            A(f'v_dot2c_f32_bf16 v13, {v(b+d)}, {v(b+d)}')
    A('v_permlane32_swap_b32 v12, v13')
    A('v_add_f32 v12, v12, v13')
    A('v_lshlrev_b32 v7, 2, v3')
    A('s_mul_i32 s34, s30, 3584')
    A('s_lshl_b32 s35, s16, 8')
    A('s_add_u32 s34, s34, s35')
    A(f's_add_u32 s34, s34, {ST}')
    A('buffer_store_dword v12, v7, s[8:11], s34 offen')
    A('buffer_store_dword v14, v7, s[8:11], s34 offen offset:1024')
    A('buffer_store_dword v14, v7, s[8:11], s34 offen offset:2048')
    A('s_cmp_ge_u32 s16, 2')
    A('s_cbranch_scc1 P_end')
    A('buffer_store_dword v14, v7, s[8:11], s34 offen offset:3072')
    A.label('P_end')
    A('s_endpgm')
    return A, NWG

KD = """.p2align 6
.amdhsa_kernel {n}
  .amdhsa_next_free_vgpr {v}
  .amdhsa_next_free_sgpr 102
  .amdhsa_accum_offset {a}
  .amdhsa_group_segment_fixed_size 0
  .amdhsa_kernarg_size 80
  .amdhsa_user_sgpr_count 2
  .amdhsa_user_sgpr_kernarg_segment_ptr 1
  .amdhsa_system_sgpr_workgroup_id_x 1
  .amdhsa_float_denorm_mode_32 3
.end_amdhsa_kernel
"""

def assemble(kernels):
    out = ''
    for (n, A, g, b, lds, vg, ac) in kernels:
        out += f'; @launch kernel={n} grid=({g},1,1) block=({b},1,1) lds={lds}\n'
    out += '.amdgcn_target "amdgcn-amd-amdhsa--gfx950"\n.text\n'
    for (n, A, g, b, lds, vg, ac) in kernels:
        out += f'.globl {n}\n.p2align 8\n.type {n},@function\n{n}:\n' + A.text()
    out += '.section .rodata,"a"\n'
    for (n, A, g, b, lds, vg, ac) in kernels:
        out += KD.format(n=n, v=vg, a=ac)
    return out

if __name__ == '__main__':
    P, nwg = gen_pack()
    ks = [('pack_kernel', P, nwg, 256, 34816, 64, 64)]
    try:
        from gen_main import gen_main
        opts = dict(a.split('=') for a in sys.argv[2:])
        M = gen_main(**{k: int(x) for k, x in opts.items()})
        ks.append(('main_kernel', M, 256, 256, 163840, 512, 256))
        print('main stats', M.stats, file=sys.stderr)
    except ImportError:
        pass
    open(sys.argv[1], 'w').write(assemble(ks))
```

```python
import re

REG_RE = re.compile(r'^(-|abs\()?([vas])(\d+)\)?$|^(-|abs\()?([vas])\[(\d+):(\d+)\]\)?$')

def parse_reg(op):
    op = op.strip()
    if op in ('vcc',): return [('s', 106), ('s', 107)]
    if op == 'vcc_lo': return [('s', 106)]
    if op == 'vcc_hi': return [('s', 107)]
    if op == 'exec': return [('s', 126), ('s', 127)]
    if op == 'exec_lo': return [('s', 126)]
    if op == 'exec_hi': return [('s', 127)]
    if op == 'm0': return [('s', 124)]
    m = REG_RE.match(op)
    if not m: return []
    if m.group(2):
        return [(m.group(2), int(m.group(3)))]
    return [(m.group(5), i) for i in range(int(m.group(6)), int(m.group(7)) + 1)]

TRANS = ('v_exp_f32', 'v_log_f32', 'v_rcp_f32', 'v_rsq_f32', 'v_sqrt_f32', 'v_sin_f32', 'v_cos_f32')

class Ins:
    __slots__ = ('text', 'mn', 'cls', 'rd', 'wr', 'ws', 'srcc', 'ab', 'wide_store', 'lds_dma', 'data')
    def __init__(self, text):
        self.text = text
        t = text.split(';')[0].strip()
        parts = t.split(None, 1)
        mn = parts[0]
        self.mn = mn
        rest = parts[1] if len(parts) > 1 else ''
        ops = [o.strip() for o in re.split(r',(?![^\[]*\])', rest)] if rest else []
        mods = []
        if ops:
            sp = ops[-1].split()
            if sp:
                ops[-1] = sp[0]; mods = sp[1:]
        regs = [parse_reg(o) for o in ops]
        self.rd = set(); self.wr = set(); self.ws = 1
        self.srcc = set(); self.ab = set(); self.wide_store = False; self.lds_dma = False; self.data = set()
        R = lambda i: set(regs[i]) if i < len(regs) else set()
        allr = lambda a: set().union(*[set(r) for r in regs[a:]]) if len(regs) > a else set()
        if mn == 's_nop':
            self.cls = 'nop'; self.ws = int(ops[0], 0) + 1
        elif mn.startswith('v_mfma'):
            self.cls = 'mfma'; self.wr = R(0); self.ab = R(1) | R(2); self.srcc = R(3); self.rd = self.ab | self.srcc
        elif mn.startswith('v_'):
            base = mn.replace('_e32', '').replace('_e64', '')
            self.cls = 'dot' if base.startswith('v_dot') else ('trans' if base in TRANS else 'valu')
            if base.startswith('v_permlane') and 'swap' in base:
                self.cls = 'perm'; self.wr = R(0) | R(1); self.rd = R(0) | R(1)
            elif base.startswith('v_cmp'):
                self.wr = R(0); self.rd = allr(1)
            elif base in ('v_add_co_u32', 'v_sub_co_u32', 'v_addc_co_u32', 'v_subb_co_u32'):
                self.wr = R(0) | R(1); self.rd = allr(2)
            elif base in ('v_readfirstlane_b32', 'v_readlane_b32'):
                self.cls = 'rdlane'; self.wr = R(0); self.rd = allr(1)
            else:
                self.wr = R(0); self.rd = allr(1)
                if base in ('v_fmac_f32', 'v_dot2c_f32_bf16', 'v_writelane_b32'): self.rd |= R(0)
                if base == 'v_cndmask_b32' and len(ops) == 3: self.rd |= set(parse_reg('vcc'))
            if any(m.startswith(('row_', 'quad_perm', 'wave_')) for m in mods) or '_dpp' in mn: self.cls = 'dpp'
        elif mn.startswith('ds_'):
            self.cls = 'ds'
            if mn.startswith(('ds_read', 'ds_bpermute', 'ds_permute', 'ds_swizzle')):
                self.wr = R(0); self.rd = allr(1)
            else:
                self.rd = allr(0)
        elif mn.startswith(('buffer_', 'global_')):
            self.cls = 'vmem'
            if mn in ('buffer_inv', 'buffer_wbl2'):
                pass
            elif 'lds' in mods or '_lds_' in mn:
                self.lds_dma = True; self.rd = allr(0) | set(parse_reg('m0'))
            elif '_load' in mn:
                self.wr = R(0); self.rd = allr(1)
            else:
                self.rd = allr(0)
                self.data = R(0) if mn.startswith('buffer_') else R(1)
                if 'x4' in mn or 'x3' in mn: self.wide_store = True
                if 'atomic' in mn and 'sc0' in mods: self.wr = R(0)
        elif mn.startswith(('s_load', 's_buffer_load', 's_memtime', 's_memrealtime')):
            self.cls = 'smem'; self.wr = R(0); self.rd = allr(1)
        elif mn.startswith('s_'):
            self.cls = 'salu'
            if mn.startswith(('s_cmp', 's_cbranch', 's_branch', 's_waitcnt', 's_barrier', 's_endpgm', 's_sleep', 's_setprio', 's_bitcmp')):
                self.rd = allr(0)
            else:
                self.wr = R(0); self.rd = allr(1)
                if 'saveexec' in mn: self.wr |= set(parse_reg('exec')); self.rd |= set(parse_reg('exec'))
        else:
            raise ValueError('unknown instruction: ' + text)

VALU_LIKE = ('valu', 'trans', 'dot', 'perm', 'rdlane', 'dpp')

def need_states(p, c):
    n = 0
    pv = p.cls in VALU_LIKE
    cv = c.cls in VALU_LIKE
    vg = lambda S: {r for r in S if r[0] in 'va'}
    sg = lambda S: {r for r in S if r[0] == 's'}
    if pv:
        w = vg(p.wr)
        if c.cls == 'mfma' and w & c.rd: n = max(n, 3 if p.cls == 'dot' else 2)
        if c.cls == 'perm' and w & c.rd: n = max(n, 2)
        if c.cls == 'dpp' and w & c.rd: n = max(n, 2)
        if c.cls == 'rdlane' and w & c.rd: n = max(n, 1)
        if p.cls == 'trans' and cv and w & c.rd: n = max(n, 1)
        if p.cls == 'dot' and w & (c.rd | c.wr):
            same = (c.mn == p.mn) and (c.wr == p.wr) and not (w & (c.rd - c.wr))
            if not same: n = max(n, 3)
        ws = sg(p.wr)
        if ws:
            if cv and ws & c.rd: n = max(n, 4 if c.cls == 'rdlane' else 2)
            if c.cls == 'vmem' and ws & c.rd: n = max(n, 5)
            if c.cls == 'salu' and ws & c.rd: n = max(n, 1)
            if ws & set(parse_reg('exec')): n = max(n, 5)
    if p.cls == 'mfma':
        passes = 8 if '32x32x16' in p.mn else 4
        raw = {8: 12, 4: 8}[passes] + 1
        ovl = {8: 10, 4: 6}[passes]
        war = {8: 7, 4: 3}[passes]
        if c.cls == 'mfma':
            if p.wr & c.ab: n = max(n, raw)
            if p.wr & c.srcc and not (p.wr == c.srcc and p.mn == c.mn): n = max(n, ovl)
            if p.wr & c.wr and not (p.wr == c.srcc and p.mn == c.mn): n = max(n, raw)
        elif cv or c.cls in ('ds', 'vmem'):
            if p.wr & (c.rd | c.wr): n = max(n, raw)
            if p.srcc & c.wr: n = max(n, war)
    if p.cls == 'salu' and ('s', 124) in p.wr and c.lds_dma: n = max(n, 1)
    if p.cls == 'vmem' and p.wide_store and (p.data & c.wr): n = max(n, 2)
    return n

class Asm:
    def __init__(self):
        self.lines = []
        self.hist = []
        self.vm = []
        self.lg = []
        self.smem_out = False
        self.nlabel = 0
        self.stats = {}
    def raw(self, text):
        self.lines.append(text)
    def comment(self, t):
        self.lines.append('  ; ' + t)
    def newlabel(self, base='L'):
        self.nlabel += 1
        return f'{base}_{self.nlabel}'
    def label(self, name):
        self.lines.append(name + ':')
    def _emit(self, ins):
        self.lines.append('  ' + ins.text)
        self.hist.append(ins)
        if len(self.hist) > 40: self.hist.pop(0)
        self.stats[ins.cls] = self.stats.get(ins.cls, 0) + 1
    def _wait_vm(self, n):
        n = min(n, 63)
        self._emit(Ins(f's_waitcnt vmcnt({n})'))
        self.vm = [e for e in self.vm if e['after'] < n]
    def _wait_lg(self, n):
        if self.smem_out: n = 0
        n = min(n, 15)
        self._emit(Ins(f's_waitcnt lgkmcnt({n})'))
        self.lg = [e for e in self.lg if e['after'] < n]
        if n == 0: self.smem_out = False
    def wait_vm_tok(self, tok):
        c = [e['after'] for e in self.vm if e['tok'] == tok]
        if c: self._wait_vm(min(c))
    def wait_lg_tok(self, tok):
        c = [e['after'] for e in self.lg if e['tok'] == tok]
        if c: self._wait_lg(min(c))
    def wait_vm_all(self, force=False):
        if self.vm or force: self._wait_vm(0)
    def wait_lg_all(self, force=False):
        if self.lg or force: self._wait_lg(0)
    def need(self, *ops):
        regs = set()
        for o in ops: regs |= set(parse_reg(o))
        c = [e['after'] for e in self.vm if e['regs'] & regs]
        if c: self._wait_vm(min(c))
        c = [e['after'] for e in self.lg if e['regs'] & regs]
        if c: self._wait_lg(min(c))
    def snapshot(self):
        return ([dict(e) for e in self.vm], [dict(e) for e in self.lg], self.smem_out)
    def merge(self, snap):
        for q, o in ((self.vm, snap[0]), (self.lg, snap[1])):
            mine = {e['id']: e for e in q}
            for e in o:
                if e['id'] in mine: mine[e['id']]['after'] = min(mine[e['id']]['after'], e['after'])
                else: q.append(dict(e))
            q.sort(key=lambda e: -e['after'])
        self.smem_out |= snap[2]
        self.hazard_fence()
    def restore(self, snap):
        self.vm = [dict(e) for e in snap[0]]; self.lg = [dict(e) for e in snap[1]]; self.smem_out = snap[2]
    def hazard_fence(self):
        self._emit(Ins('s_nop 7')); self._emit(Ins('s_nop 5'))
        self.hist = []
    _id = 0
    def __call__(self, text, tok=None):
        ins = Ins(text)
        touch = ins.rd | ins.wr
        c = [e['after'] for e in self.vm if e['regs'] & touch]
        if c: self._wait_vm(min(c))
        c = [e['after'] for e in self.lg if e['regs'] & touch]
        if c: self._wait_lg(min(c))
        dist = 0; need = 0
        for p in reversed(self.hist):
            n = need_states(p, ins)
            if n > dist: need = max(need, n - dist)
            dist += p.ws
            if dist > 20: break
        while need > 0:
            k = min(need, 8)
            self._emit(Ins(f's_nop {k-1}')); need -= k
        self._emit(ins)
        Asm._id += 1
        if ins.cls == 'vmem':
            for e in self.vm: e['after'] += 1
            self.vm.append(dict(regs=set(ins.wr), tok=tok, after=0, id=Asm._id))
        elif ins.cls == 'ds':
            for e in self.lg: e['after'] += 1
            self.lg.append(dict(regs=set(ins.wr), tok=tok, after=0, id=Asm._id))
        elif ins.cls == 'smem':
            for e in self.lg: e['after'] += 1
            self.lg.append(dict(regs=set(ins.wr), tok=tok, after=0, id=Asm._id))
            self.smem_out = True
        return ins
    def text(self):
        return '\n'.join(self.lines) + '\n'

def v(i, n=1): return f'v{i}' if n == 1 else f'v[{i}:{i+n-1}]'
def a(i, n=1): return f'a{i}' if n == 1 else f'a[{i}:{i+n-1}]'
def s(i, n=1): return f's{i}' if n == 1 else f's[{i}:{i+n-1}]'

def interleave(A, main, fill, per):
    fi = 0
    def emit(x):
        if callable(x): x()
        elif isinstance(x, tuple): A(x[0])
        else: A(x)
    cost = lambda x: x[1] if isinstance(x, tuple) else 1
    for m in main:
        for y in (m if isinstance(m, list) else [m]): emit(y)
        b = per
        while fi < len(fill) and b >= cost(fill[fi]):
            b -= cost(fill[fi]); emit(fill[fi]); fi += 1
    while fi < len(fill):
        emit(fill[fi]); fi += 1


def emit(A, x):
    if x is None: return
    if callable(x): x()
    elif isinstance(x, list):
        for y in x: emit(A, y)
    elif isinstance(x, tuple): A(x[0])
    else: A(x)

class Stream:
    def __init__(self, items, per, start=0):
        self.items = list(items); self.per = per; self.start = start; self.credit = 0.0; self.i = 0
    def done(self): return self.i >= len(self.items)

def sched(A, steps, streams, flush=()):
    cost = lambda x: x[1] if isinstance(x, tuple) else 1
    for n, st in enumerate(steps):
        emit(A, st)
        for S in streams:
            if n < S.start: continue
            S.credit += S.per
            while not S.done() and S.credit >= cost(S.items[S.i]) - 1e-9:
                S.credit -= cost(S.items[S.i]); emit(A, S.items[S.i]); S.i += 1
            if S.done(): S.credit = 0
    for S in streams: S.start = max(0, S.start - len(steps))
    for S in flush:
        while not S.done():
            emit(A, S.items[S.i]); S.i += 1
```

```python
import sys
sys.path.insert(0, 'gen')
from asmlib import *
from layout import *
import struct

MF = 'v_mfma_f32_32x32x16_bf16'
ONES = 0x3f803f80
POLL_LIMIT = 300000
def f32(x): return '0x%08x' % struct.unpack('<I', struct.pack('<f', x))[0]
LOG2E = 1.4426950408889634
LN2 = 0.6931471805599453
WS = 's[8:11]'; OUT = 's[12:15]'
sW, sIDX, sL, sMODE = 16, 17, 18, 19
sSH8, sSH15, sONES, sLN2 = 20, 21, 22, 23
aXA, aSTA, aPQW, aKVW, aFKVW, aFKVR, aWO, aKVR, aPQR, aXO, aSTO, aHW, aFHW, aFHR, aHR0, aHR1, aWQ, aW13, aW2a, aW2b = range(24, 44)
sXCC, sGRP, sCNT, sOUT = 44, 45, 46, 47
mK = 's[48:49]'; mZ = 's[50:51]'; mLO = 's[52:53]'; mP = 's[54:55]'
sT = 56
sU = 4
TSB = 60; NS = 20
SA = 0; SB = T; MISC = 2*T; SC_ = 2*T + 15360; SD = SC_ + T; SE = SD + T
RARR = MISC + 8192
vL0, vL4, vPH, vRR, vRW = 1, 2, 3, 4, 5
vP = 6
vt0, vt1, vL1, vL2, vc0, vc1 = 10, 11, 12, 13, 14, 15
vRES = 16
W0 = 24

def gen_main(ts=0, stop=99, fast=1):
    A = Asm()
    CM = {1:0, 2:1, 4:2, 5:3, 7:4, 8:5, 9:6, 10:7, 11:8, 12:9}
    def stamp(i, lvl=1):
        if ts == 4:
            if i in CM:
                A(f's_memrealtime {s(TSB+2*CM[i],2)}'); A(f's_memtime {s(TSB+2*(10+CM[i]),2)}')
            return
        if ts & lvl: A(f's_memrealtime {s(TSB+2*i,2)}')
    def lds(off):
        return (v((vL0, vL1, vL2)[off >> 16]), off & 0xffff)
    def dsr(dst, off):
        b, o = lds(off)
        return f'ds_read_b128 {v(dst,4)}, {b} offset:{o}'
    def run(x): emit(A, x)
    def l0(fn):
        def f():
            L = A.newlabel('Ll0')
            A(f's_cbranch_vccnz {L}')
            before = {e['id']: e['after'] for e in A.vm}
            mark = A.hist[-1]
            nl = len(A.lines)
            run(fn)
            assert not any('s_waitcnt' in x for x in A.lines[nl:]), A.lines[nl:]
            for e in A.vm:
                if e['id'] in before: e['after'] = before[e['id']]
            for h in reversed(A.hist):
                if h is mark: break
                h.ws = 0
            A.label(L)
        return f
    def frag_loads(dsts, sbase, st, sc='', tok=None, first=0, selfc=False):
        out = []
        for n, d in enumerate(dsts):
            g = first + n; it = []
            if (g % 4 == 0 or n == 0 or selfc) and g >= 4:
                it.append(f's_add_u32 {s(st)}, {s(sbase)}, {(g//4)*4*KB}')
            so = s(st) if g >= 4 else s(sbase)
            it.append((lambda d=d, so=so, g=g: A(f'buffer_load_dwordx4 {d}, {v(vL0)}, {WS}, {so} offen offset:{(g%4)*KB} {sc}', tok=tok)))
            out.append(it)
        return out
    def dma(ldsbase, sbase, goff, n, ssh, st, tok):
        out = []
        for i in range(n):
            it = []
            if i % 4 == 0:
                it.append(f's_add_u32 {s(st)}, {s(sbase)}, {s(ssh)}')
                it.append(f's_add_u32 {s(st)}, {s(st)}, {goff + i*KB}')
                it.append(f's_add_u32 m0, {s(ssh)}, {ldsbase + i*KB}')
            it.append((lambda i=i: A(f'buffer_load_dwordx4 {v(vL0)}, {WS}, {s(st)} offen offset:{(i%4)*KB} lds', tok=tok)))
            out.append(it)
        return out
    def poll_loop(loads, reduce_, check):
        L = A.newlabel('Lpoll'); D = A.newlabel('Lpd')
        A(f's_mov_b32 {s(sCNT)}, 0')
        A.label(L)
        run(loads)
        A(f's_add_u32 {s(sCNT)}, {s(sCNT)}, 1')
        A.wait_vm_all()
        run(reduce_)
        A(f's_cmp_gt_u32 {s(sCNT)}, {POLL_LIMIT}')
        A(f's_cbranch_scc1 {D}')
        run(check)
        A(f's_cbranch_scc0 {L}')
        A.label(D)
    def acquire():
        L = A.newlabel('Lacq')
        A(f's_cmp_lg_u32 {s(sMODE)}, 0')
        A(f's_cbranch_scc1 {L}')
        A('buffer_inv sc1')
        A.wait_vm_all()
        A.label(L)
    def publish(store_fn):
        F = A.newlabel('Lfast'); D = A.newlabel('Lpub')
        A(f's_cmp_lg_u32 {s(sMODE)}, 0')
        A(f's_cbranch_scc1 {F}')
        snap = A.snapshot()
        A('buffer_wbl2 sc1')
        A.wait_vm_all()
        store_fn('sc1')
        A(f's_branch {D}')
        A.label(F)
        A.restore(snap)
        store_fn('')
        A.label(D)
    def flag_store(soff, val):
        def f(sc):
            A('s_mov_b64 exec, 1')
            A(f'buffer_store_dword {v(val)}, {v(vL4)}, {WS}, {s(soff)} offen {sc}')
            A('s_mov_b64 exec, -1')
        return f
    STR = 208
    def stat_loads():
        return [f'buffer_load_dwordx4 {v(STR+4*q,4)}, {v(vL0)}, {WS}, {s(aSTA)} offen offset:{q*KB} sc1' for q in range(4)]
    def poll_stats():
        red = [f'v_min3_u32 {v(vP)}, {v(STR)}, {v(STR+1)}, {v(STR+2)}',
               f'v_min3_u32 {v(vP+1)}, {v(STR+3)}, {v(STR+4)}, {v(STR+5)}',
               f'v_min3_u32 {v(vP+2)}, {v(STR+6)}, {v(STR+7)}, {v(STR+8)}',
               f'v_min3_u32 {v(vP+3)}, {v(STR+9)}, {v(STR+10)}, {v(STR+11)}',
               f'v_min3_u32 {v(vP)}, {v(vP)}, {v(STR+12)}, {v(STR+13)}',
               f'v_min3_u32 {v(vP+1)}, {v(vP+1)}, {v(vP+2)}, {v(vP+3)}',
               f'v_min_u32 {v(vP)}, {v(vP)}, {v(vP+1)}',
               f'v_cmp_ne_u32 {mP}, 0, {v(vP)}']
        poll_loop(stat_loads(), red, [f's_cmp_eq_u64 {mP}, exec'])
        acquire()
    def stat_final(M, vm, vve, vr):
        o = []
        for c in range(1, 7): o.append(f'v_add_f32 {v(STR)}, {v(STR)}, {v(STR+c)}')
        for c in range(8, 14): o.append(f'v_add_f32 {v(STR+7)}, {v(STR+7)}, {v(STR+c)}')
        o.append(f'v_add_f32 {v(vm)}, {v(STR)}, {v(STR+7)}')
        o.append(f'v_mov_b32 {v(vve)}, {v(vm)}')
        o.append(f'v_mov_b32 {v(M+2)}, 0')
        o.append(f'v_mov_b32 {v(M+3)}, 0')
        o.append(f'v_permlane32_swap_b32 {v(vm)}, {v(vve)}')
        o.append(f'v_mul_f32 {v(vm)}, {f32(-1.0/448)}, {v(vm)}')
        o.append(f'v_mul_f32 {v(vve)}, {f32(1.0/448)}, {v(vve)}')
        o.append(f'v_cvt_pk_bf16_f32 {v(M)}, {v(vm)}, {v(vm)}')
        o.append(f'v_fma_f32 {v(vve)}, -{v(vm)}, {v(vm)}, {v(vve)}')
        o.append(f'v_and_b32 {v(M+1)}, 0xffff0000, {v(M)}')
        o.append(f'v_max_f32 {v(vve)}, 0, {v(vve)}')
        o.append(f'v_sub_f32 {v(M+1)}, {v(vm)}, {v(M+1)}')
        o.append(f'v_add_f32 {v(vve)}, {f32(1e-5)}, {v(vve)}')
        o.append(f'v_cvt_pk_bf16_f32 {v(M+1)}, {v(M+1)}, {v(M+2)}')
        o.append((f'v_rsq_f32 {v(vr)}, {v(vve)}', 2))
        return o
    def tile_store(ACC):
        for d in range(4): A(f'v_cvt_pk_bf16_f32 {v(vRES+d)}, {v(ACC+2*d)}, {v(ACC+2*d+1)}')
        A(f'buffer_store_dwordx4 {v(vRES,4)}, {v(vL0)}, {WS}, {s(aXO)} offen')
        for d in range(4, 8): A(f'v_cvt_pk_bf16_f32 {v(vRES+d)}, {v(ACC+2*d)}, {v(ACC+2*d+1)}')
        A(f'buffer_store_dwordx4 {v(vRES+4,4)}, {v(vL0)}, {WS}, {s(aXO)} offen offset:1024')
        A(f'v_mov_b32 {v(vt0)}, 0'); A(f'v_mov_b32 {v(vt1)}, 0')
        for d in range(8): A(f'v_dot2c_f32_bf16 {v(vt0)}, {s(sONES)}, {v(vRES+d)}')
        for d in range(8): A(f'v_dot2c_f32_bf16 {v(vt1)}, {v(vRES+d)}, {v(vRES+d)}')
        A(f'v_permlane32_swap_b32 {v(vt0)}, {v(vt1)}')
        A(f'v_add_f32 {v(vt0)}, {v(vt0)}, {v(vt1)}')
        A(f'v_or_b32 {v(vt0)}, 1, {v(vt0)}')
        A.wait_vm_all()
        publish(lambda sc: A(f'buffer_store_dword {v(vt0)}, {v(vL0)}, {WS}, {s(aSTO)} offen {sc}'))
        A(f's_add_u32 {s(aSTO)}, {s(aSTO)}, {ST_STR}')

    A('s_cmp_ge_u32 s2, 256')
    A('s_cbranch_scc1 M_end')
    A('s_load_dwordx2 s[8:9], s[0:1], 72')
    A('s_load_dwordx2 s[12:13], s[0:1], 56')
    if ts:
        for i in range(2*NS): A(f's_mov_b32 {s(TSB+i)}, 0')
    stamp(0)
    A(f'v_lshrrev_b32 {v(vt0)}, 6, v0')
    A(f'v_and_b32 {v(vt1)}, 63, v0')
    A(f'v_readfirstlane_b32 {s(sW)}, {v(vt0)}')
    A(f'v_lshlrev_b32 {v(vL0)}, 4, {v(vt1)}')
    A(f's_and_b32 {s(sGRP)}, s2, 7')
    A(f's_lshr_b32 {s(sIDX)}, s2, 3')
    t0, t1, t2, t3 = sT, sT+1, sT+2, sT+3
    c16, tta, tto, cto = sU, sU+1, sU+2, sU+3
    A(f's_and_b32 {s(c16)}, {s(sIDX)}, 15')
    A(f's_mul_i32 {s(aWQ)}, {s(c16)}, {3*T}')
    A(f's_add_u32 {s(aWQ)}, {s(aWQ)}, {PWQKV}')
    A(f's_mul_i32 {s(sSH15)}, {s(sW)}, 15')
    A(f's_min_u32 {s(sSH15)}, {s(sSH15)}, 43')
    A(f's_lshl_b32 {s(sSH15)}, {s(sSH15)}, 10')
    A(f's_mov_b32 s10, {WS_BYTES}'); A(f's_mov_b32 s11, 0x00020000')
    A(f's_lshr_b32 {s(t0)}, {s(sIDX)}, 4')
    A(f's_lshl_b32 {s(t0)}, {s(t0)}, 2')
    A(f's_lshl_b32 {s(t1)}, {s(sGRP)}, 3')
    A(f's_add_u32 {s(tta)}, {s(t0)}, {s(t1)}')
    A(f's_add_u32 {s(tta)}, {s(tta)}, {s(sW)}')
    A(f's_mul_i32 {s(aXA)}, {s(tta)}, {28*KB}')
    A(f's_add_u32 {s(aXA)}, {s(aXA)}, {XF}')
    A(f's_lshl_b32 {s(aSTA)}, {s(tta)}, 12')
    A(f's_add_u32 {s(aSTA)}, {s(aSTA)}, {ST}')
    wkv = dma(SA, aWQ, 0, 15, sSH15, 3, 'wkv')
    setup = []
    S_ = setup.append
    S_(f'v_lshlrev_b32 {v(vL4)}, 2, {v(vt1)}')
    S_(f'v_add_u32 {v(vL1)}, 0x10000, {v(vL0)}')
    S_(f'v_add_u32 {v(vL2)}, 0x20000, {v(vL0)}')
    S_(f's_mul_i32 {s(t0)}, {s(sIDX)}, 37')
    S_(f's_lshr_b32 {s(t0)}, {s(t0)}, 8')
    S_(f's_mul_i32 {s(t2)}, {s(t0)}, 7')
    S_(f's_sub_u32 {s(cto)}, {s(sIDX)}, {s(t2)}')
    S_(f's_lshl_b32 {s(cto)}, {s(cto)}, 1')
    S_(f's_and_b32 {s(t2)}, {s(sW)}, 1')
    S_(f's_add_u32 {s(cto)}, {s(cto)}, {s(t2)}')
    S_(f's_lshl_b32 {s(t0)}, {s(t0)}, 1')
    S_(f's_add_u32 {s(t0)}, {s(t0)}, {s(t1)}')
    S_(f's_lshr_b32 {s(t2)}, {s(sW)}, 1')
    S_(f's_add_u32 {s(tto)}, {s(t0)}, {s(t2)}')
    S_(f's_lshl_b32 {s(sSH8)}, {s(sW)}, 3')
    S_(f's_min_u32 {s(sSH8)}, {s(sSH8)}, 21')
    S_(f's_lshl_b32 {s(sSH8)}, {s(sSH8)}, 10')
    S_(f's_mov_b32 {s(sONES)}, {ONES}')
    S_(f's_mov_b32 {s(sLN2)}, {f32(LN2)}')
    S_(f's_mov_b32 {s(sL)}, 0')
    S_(f's_mov_b32 {s(sMODE)}, 0')
    S_('s_mov_b64 vcc, 0')
    S_(f's_mov_b32 s48, 0x0fffffff'); S_(f's_mov_b32 s49, 0x0fffffff')
    S_(f's_mov_b32 s50, 0x10000000'); S_(f's_mov_b32 s51, 0x10000000')
    S_(f's_mov_b32 s52, -1'); S_(f's_mov_b32 s53, 0')
    S_(f's_mov_b32 s14, {2048*448*2}'); S_(f's_mov_b32 s15, 0x00020000')
    S_(f'v_mov_b32 {v(vc0)}, {f32(1e-6)}')
    S_(f'v_mov_b32 {v(vc1)}, {ONES}')
    S_(f'v_bfe_u32 {v(vPH)}, {v(vt1)}, 2, 1')
    S_(f'v_lshlrev_b32 {v(vPH)}, 7, {v(vPH)}')
    S_(f'v_and_b32 {v(vt0)}, 3, {v(vt1)}')
    S_(f'v_lshl_add_u32 {v(vPH)}, {v(vt0)}, 2, {v(vPH)}')
    S_(f'v_lshrrev_b32 {v(vRR)}, 5, {v(vt1)}')
    S_(f'v_lshlrev_b32 {v(vRR)}, 4, {v(vRR)}')
    S_(f's_lshl_b32 {s(t2)}, {s(sW)}, 8')
    S_(f's_add_u32 {s(t2)}, {s(t2)}, {RARR}')
    S_(f'v_add_u32 {v(vRR)}, {s(t2)}, {v(vRR)}')
    S_(f'v_add_u32 {v(vRW)}, {s(t2)}, {v(vL4)}')
    def lin(dst, base, *terms):
        first = True
        for reg, mul in terms:
            tt = dst if first else t3
            S_(f's_mul_i32 {s(tt)}, {s(reg)}, {mul}')
            if not first: S_(f's_add_u32 {s(dst)}, {s(dst)}, {s(t3)}')
            first = False
        S_(f's_add_u32 {s(dst)}, {s(dst)}, {base}')
    lin(aXO, XF, (tto, 28*KB), (cto, 2*KB))
    lin(aW13, PW13, (c16, 7*T))
    lin(aPQW, PQ, (tta, 32*KB), (c16, 2*KB))
    lin(aKVW, KV, (c16, 4*KB), (sW, KB))
    lin(aFKVW, FKV, (sGRP, 128), (sIDX, 4))
    S_(f's_mov_b32 {s(aFKVR)}, {FKV}')
    lin(aWO, PWO, (cto, 32*KB))
    lin(aKVR, KV, (sW, 16*KB))
    lin(aPQR, PQ, (t0, 32*KB), (sW, 8*KB))
    S_(f's_lshr_b32 {s(t1)}, {s(cto)}, 2')
    S_(f's_and_b32 {s(t2)}, {s(cto)}, 3')
    lin(aSTO, ST + ST_STR, (tto, 4*KB), (t1, KB), (t2, 4))
    lin(aHW, HB, (tta, 112*KB), (c16, 7*KB))
    lin(aFHW, FH, (tta, 128), (c16, 4))
    lin(aFHR, FH, (t0, 128), (sW, 16))
    lin(aHR0, HB, (tto, 112*KB), (sW, 28*KB))
    S_(f's_xor_b32 {s(t1)}, {s(tto)}, 1')
    lin(aHR1, HB, (t1, 112*KB), (sW, 28*KB))
    lin(aW2a, PW2, (cto, 112*KB), (sW, 28*KB))
    S_(f's_xor_b32 {s(t1)}, {s(cto)}, 1')
    lin(aW2b, PW2, (t1, 112*KB), (sW, 28*KB))
    lin(sOUT, 0, (tto, 28*KB), (cto, 64))
    S_(f's_getreg_b32 {s(sXCC)}, hwreg(HW_REG_XCC_ID, 0, 4)')
    S_(f's_add_u32 {s(sXCC)}, {s(sXCC)}, 1')
    sched(A, wkv, [Stream(setup, 8)], flush=[])
    st_ = Stream(setup[15*8:], 1); sched(A, [], [], flush=[st_])
    run(stat_loads())
    head_state = A.snapshot()
    A('s_branch M_qkv')

    A.label('M_loop')
    A.vm = []; A.lg = []; A.hazard_fence()
    A.wait_vm_all(force=True)
    poll_stats()
    A.label('M_qkv')
    A.merge(head_state)
    stamp(1)
    X = W0; AK = 136; AV = 152; AQ = 168; WB = 184; M = 208; TMP = 212; RR = 224; RL = 240
    NX0 = 8
    xl = frag_loads([v(X+4*t,4) for t in range(28)], aXA, sT, 'sc1')
    run(xl[:NX0])
    for it in dma(SC_, aWQ, 2*T, 8, sSH8, sT+1, 'wq'): l0(it)()
    l0(f'buffer_load_dwordx4 {v(vRES,4)}, {v(vL0)}, {WS}, {s(aXO)} offen')()
    l0(f'buffer_load_dwordx4 {v(vRES+4,4)}, {v(vL0)}, {WS}, {s(aXO)} offen offset:1024')()
    A(f's_add_u32 {s(aSTA)}, {s(aSTA)}, {ST_STR}')
    A.wait_vm_tok('wkv')
    A('s_barrier')
    vm_, vve_, vr_, vrl_ = TMP+8, TMP+9, TMP+10, TMP+11
    sf = stat_final(M, vm_, vve_, vr_)
    sf.append(f'v_mul_f32 {v(vrl_)}, {f32(LOG2E)}, {v(vr_)}')
    sf.append(f'v_cndmask_b32 {v(vt0)}, {v(vrl_)}, {v(vr_)}, {mLO}')
    sf.append(f'ds_write_b32 {v(vRW)}, {v(vt0)}')
    for c in range(4): sf.append(f'ds_read_b128 {v(RL+4*c,4)}, {v(vRR)} offset:{128 + 32*c}')
    for c in range(4): sf.append(f'ds_read_b128 {v(RR+4*c,4)}, {v(vRR)} offset:{32*c}')
    kb = lambda t: WB + 4*(t % 3); vb = lambda t: WB + 12 + 4*(t % 3)
    for t in range(2):
        A(dsr(kb(t), SA + t*KB)); A(dsr(vb(t), SB + t*KB))
    main = []
    for t in range(29):
        xa = v(X+4*t,4) if t < 28 else v(M,4)
        grp = []
        if t + 2 < 29: grp += [dsr(kb(t+2), SA + (t+2)*KB), dsr(vb(t+2), SB + (t+2)*KB)]
        grp.append(lambda t=t: A.need(v(kb(t),4), v(vb(t),4)))
        grp.append(f'{MF} {v(AK,16)}, {xa}, {v(kb(t),4)}, {v(AK,16) if t else 0}')
        grp.append(f'{MF} {v(AV,16)}, {xa}, {v(vb(t),4)}, {v(AV,16) if t else 0}')
        main.append(grp)
    w2l = [l0(it) for it in frag_loads([a(4*t,4) for t in range(28)], aW2a, 3, selfc=True)] + \
          [l0(it) for it in frag_loads([a(112+4*t,4) for t in range(28)], aW2b, 3, selfc=True)]
    wof_r3 = [a(224+4*i,4) for i in range(8)]
    vq = Stream(xl[NX0:] + dma(SD, aW13, 0, 15, sSH15, sT+1, 'w13a'), 1)
    sv = Stream(sf, 3, start=2)
    sched(A, main[:28], [vq, sv], flush=[sv])
    run(main[28])
    stamp(2)
    A.wait_vm_tok('wq')
    A.wait_lg_all()
    A('s_barrier')
    qb = lambda t: WB + 4*(t % 6)
    for t in range(4): A(dsr(qb(t), SC_ + t*KB))
    mq = []
    for t in range(29):
        grp = []
        xa = v(X+4*t,4) if t < 28 else v(M,4)
        if t % 2 == 0:
            for u in (t+4, t+5):
                if u < 29: grp.append(dsr(qb(u), SC_ + u*KB))
            grp.append(lambda t=t: A.need(v(qb(t),4), v(qb(min(t+1,28)),4)))
        grp.append(f'{MF} {v(AQ,16)}, {v(qb(t),4)}, {xa}, {v(AQ,16) if t else 0}')
        mq.append(grp)
    T2 = TMP
    def phi4(acc, j, scale):
        e = T2 + (j % 4) * 2; m = e + 1
        return [f'v_mul_f32 {v(acc+j)}, {v(acc+j)}, {v(scale)}',
                (f'v_exp_f32 {v(e)}, {v(acc+j)} clamp', 2),
                f'v_max_f32 {v(m)}, 0, {v(acc+j)}',
                f'v_fma_f32 {v(m)}, {v(m)}, {s(sLN2)}, {v(vc0)}',
                f'v_add_f32 {v(acc+j)}, {v(m)}, {v(e)}']
    def chains_pairwise(mk):
        out = []
        for j0 in range(0, 16, 2):
            c0, c1 = mk(j0), mk(j0+1)
            for x, y in zip(c0, c1): out += [x, y]
        return out
    ek = chains_pairwise(lambda j: phi4(AK, j, RL+j))
    for d in range(8): ek.append(f'v_cvt_pk_bf16_f32 {v(AK+d)}, {v(AK+2*d)}, {v(AK+2*d+1)}')
    for d in range(8): ek.append(f'v_cndmask_b32 {v(AK+d)}, 0, {v(AK+d)}, {mK}')
    ev = [f'v_mul_f32 {v(AV+j)}, {v(AV+j)}, {v(RR+j)}' for j in range(16)]
    for d in range(8): ev.append(f'v_cvt_pk_bf16_f32 {v(AV+d)}, {v(AV+2*d)}, {v(AV+2*d+1)}')
    for d in range(8): ev.append(f'v_cndmask_b32 {v(AV+d)}, {v(AV+d)}, {v(vc1)}, {mZ}')
    se = Stream(ek + ev, 8, start=2)
    vq.per = 0.5
    vq.items += w2l[:8]
    sched(A, mq[:20], [se, vq], flush=[se])
    KVA = RL
    A(f'{MF} {v(KVA,16)}, {v(AK,4)}, {v(AV,4)}, 0')
    A(f'{MF} {v(KVA,16)}, {v(AK+4,4)}, {v(AV+4,4)}, {v(KVA,16)}')
    A(f's_lshl_b32 {s(sT)}, {s(sW)}, 12')
    A(f'v_add_u32 {v(vt0)}, {s(sT)}, {v(vL0)}')
    A(f's_lshl_b32 {s(sT)}, {s(sW)}, 10')
    A(f'v_add_u32 {v(vt1)}, {s(sT)}, {v(vL4)}')
    sched(A, mq[20:25], [vq])
    for jq in range(4): A(f'ds_write_b128 {v(vt0)}, {v(KVA+4*jq,4)} offset:{jq*KB}', tok='kvw')
    sched(A, mq[25:], [vq], flush=[vq])
    A.wait_lg_all()
    A('s_barrier')
    for n in range(4):
        for w2 in range(4): A(f'ds_read_b32 {v(AK+4*n+w2)}, {v(vt1)} offset:{w2*4096 + n*256}')
    eq = chains_pairwise(lambda j: phi4(AQ, j, vrl_))
    run(eq[:10])
    for n in range(4):
        b = AK + 4*n
        A(f'v_add_f32 {v(b)}, {v(b)}, {v(b+1)}')
        A(f'v_add_f32 {v(b+2)}, {v(b+2)}, {v(b+3)}')
        A(f'v_add_f32 {v(b)}, {v(b)}, {v(b+2)}')
        A(f'buffer_atomic_add_f32 {v(b)}, {v(vL4)}, {WS}, {s(aKVW)} offen offset:{n*256}')
    stamp(3)
    run(eq[10:])
    for d in range(8): A(f'v_cvt_pk_bf16_f32 {v(AQ+d)}, {v(AQ+2*d)}, {v(AQ+2*d+1)}')
    A(f'buffer_store_dwordx4 {v(AQ,4)}, {v(vL0)}, {WS}, {s(aPQW)} offen sc1')
    A(f'buffer_store_dwordx4 {v(AQ+4,4)}, {v(vL0)}, {WS}, {s(aPQW)} offen offset:1024 sc1', tok='pq')
    run(dma(SC_, aW13, 2*T, 8, sSH8, sT+1, 't2'))
    A(f'v_mov_b32 {v(vt0)}, {s(sXCC)}')
    A(f's_add_u32 {s(aKVW)}, {s(aKVW)}, {KV_STR}')
    A.wait_vm_tok('pq')
    A('s_barrier')
    A(f's_cmp_lg_u32 {s(sW)}, 0')
    sn = A.snapshot()
    A('s_cbranch_scc1 M_nofkv')
    flag_store(aFKVW, vt0)('sc1')
    A.label('M_nofkv'); A.restore(sn)
    A(f's_add_u32 {s(aFKVW)}, {s(aFKVW)}, {FKV_STR}')
    stamp(4)
    if stop <= 1: A('s_branch M_fin')
    KVR = 24; PQR = 88; NUM = 152; ACC = 184; WO1 = 200
    run(frag_loads([v(KVR+4*i,4) for i in range(7)], aHW, sT))
    def fkv_load(): return [f'buffer_load_dwordx4 {v(vP,4)}, {v(vL0)}, {WS}, {s(aFKVR)} offen sc1']
    fkv_red = [f'v_min3_u32 {v(vt0)}, {v(vP)}, {v(vP+1)}, {v(vP+2)}',
               f'v_min_u32 {v(vt0)}, {v(vt0)}, {v(vP+3)}',
               f'v_cmp_ne_u32 {mP}, 0, {v(vt0)}']
    def set_mode():
        if not fast: return
        A(f'v_max3_u32 {v(vt1)}, {v(vP)}, {v(vP+1)}, {v(vP+2)}')
        A(f'v_max_u32 {v(vt1)}, {v(vt1)}, {v(vP+3)}')
        A(f'v_cmp_eq_u32 {mP}, {s(sXCC)}, {v(vt0)}')
        A(f'v_cmp_eq_u32 {s(sT,2)}, {s(sXCC)}, {v(vt1)}')
        A(f's_and_b64 {mP}, {mP}, {s(sT,2)}')
        A(f's_lshl_b32 {s(sT)}, {s(sGRP)}, 3')
        A(f's_lshr_b64 {mP}, {mP}, {s(sT)}')
        A(f's_and_b32 {s(sT)}, s54, 0xff')
        A(f's_cmp_eq_u32 {s(sT)}, 0xff')
        A(f's_cselect_b32 {s(sMODE)}, 1, 0')
    A(f's_cmp_lt_u32 {s(sIDX)}, 28')
    sn = A.snapshot()
    A('s_cbranch_scc1 M_wo')
    poll_loop(fkv_load(), fkv_red, [f's_cmp_eq_u64 {mP}, exec'])
    set_mode()
    A('s_barrier'); A('s_branch M_up')
    A.label('M_wo'); A.restore(sn); A.hazard_fence()
    wreg = {}
    order = [(4*wq + r, u) for r in range(4) for wq in range(4) for u in range(2)]
    pool = [v(WO1+4*i,4) for i in range(14)] + [v(KVR+8,4), v(KVR+12,4)] + \
           [v(KVR+16*b+8+4*i,4) for b in (1,2,3) for i in range(2)] + [v(KVR,4), v(KVR+4,4)] + wof_r3
    for k_, hu in enumerate(order): wreg[hu] = pool[k_]
    def wo_load(hu):
        g = hu[0]*2 + hu[1]
        return [f's_add_u32 {s(sT+3)}, {s(aWO)}, {(g//4)*4*KB}',
                f'buffer_load_dwordx4 {wreg[hu]}, {v(vL0)}, {WS}, {s(sT+3)} offen offset:{(g%4)*KB}']
    for hu in order[:14]: run(wo_load(hu))
    for hu in order[24:]: l0(wo_load(hu))()
    A(f's_lshl_b32 {s(sT)}, {s(sGRP)}, 3')
    A(f's_cmp_ge_u32 {s(sIDX)}, 14')
    A(f's_cselect_b32 {s(sT+1)}, 4, 0')
    A(f's_add_u32 {s(sT+2)}, {s(sT)}, {s(sT+1)}')
    poll_loop(fkv_load(), fkv_red, [f's_lshr_b64 {s(sT,2)}, {mP}, {s(sT+2)}', f's_and_b32 {s(sT)}, {s(sT)}, 15', f's_cmp_eq_u32 {s(sT)}, 15'])
    pqr = lambda hh, tt, u: PQR + ((hh*2 + tt)*2 + u)*4
    for tt in range(2):
        for hh in range(4):
            for u in range(2):
                g = tt*32 + hh*2 + u
                if g % 4 == 0: A(f's_add_u32 {s(sT+3)}, {s(aPQR)}, {g*KB}')
                A(f'buffer_load_dwordx4 {v(pqr(hh,tt,u),4)}, {v(vL0)}, {WS}, {s(sT+3)} offen offset:{(g%4)*KB} sc1')
    for d in range(8):
        A(f'v_lshlrev_b32 {v(ACC+2*d)}, 16, {v(vRES+d)}')
        A(f'v_and_b32 {v(ACC+2*d+1)}, 0xffff0000, {v(vRES+d)}')
    poll_loop(fkv_load(), fkv_red, [f's_cmp_eq_u64 {mP}, exec'])
    stamp(5)
    kvl = frag_loads([v(KVR+4*i,4) for i in range(16)], aKVR, sT+2, 'sc1')
    run(kvl[:8])
    set_mode()
    vOW, vOR = vP, vP+3
    A(f's_lshl_b32 {s(sT)}, {s(sW)}, 13')
    A(f'v_add_u32 {v(vOW)}, {s(sT)}, {v(vL0)}')
    A(f's_lshr_b32 {s(sT)}, {s(sW)}, 1')
    A(f's_lshl_b32 {s(sT)}, {s(sT)}, 15')
    A(f'v_add_u32 {v(vOR)}, {s(sT)}, {v(vL0)}')
    run(kvl[8:])
    A(f's_add_u32 {s(aKVR)}, {s(aKVR)}, {KV_STR}')
    def num_mfma(hh, tt):
        N = NUM + 16*tt
        return [f'{MF} {v(N,16)}, {v(KVR+16*hh,4)}, {v(pqr(hh,tt,0),4)}, 0',
                f'{MF} {v(N,16)}, {v(KVR+16*hh+4,4)}, {v(pqr(hh,tt,1),4)}, {v(N,16)}']
    def o_ops(hh, tt):
        N = NUM + 16*tt; P = pqr(hh, tt, 0); d0 = vt0 if tt == 0 else vP+1; d1 = vt1 if tt == 0 else vP+2
        o = [f'v_add_f32 {v(d0)}, {v(vc0)}, {v(N+12)}',
             (f'v_rcp_f32 {v(d0)}, {v(d0)}', 2),
             f'v_mov_b32 {v(d1)}, {v(d0)}',
             f'v_permlane32_swap_b32 {v(d0)}, {v(d1)}']
        for u in range(2):
            for j in range(8*u, 8*u+8): o.append(f'v_mul_f32 {v(N+j)}, {v(N+j)}, {v(d1)}')
            for d in range(4*u, 4*u+4): o.append(f'v_cvt_pk_bf16_f32 {v(P+d)}, {v(N+2*d)}, {v(N+2*d+1)}')
            o.append(f'ds_write_b128 {v(vOW)}, {v(P+4*u,4)} offset:{tt*32*KB + (hh*2+u)*KB}')
        return o
    def kv_cvt(hh):
        return [f'v_cvt_pk_bf16_f32 {v(KVR+16*hh+d)}, {v(KVR+16*hh+2*d)}, {v(KVR+16*hh+2*d+1)}' for d in range(8)]
    def s2_steps(r):
        ob = lambda i: pqr(r, 0, 0) + 4*(i % 4)
        hus = order[8*r:8*r+8]
        rd = lambda i: f'ds_read_b128 {v(ob(i),4)}, {v(vOR)} offset:{(hus[i][0]*2+hus[i][1])*KB}'
        steps = []
        for i in range(8):
            g = []
            if i == 0: g += [rd(0), rd(1), rd(2), rd(3)]
            g.append(f'{MF} {v(ACC,16)}, {wreg[hus[i]]}, {v(ob(i),4)}, {v(ACC,16)}')
            if i < 4: g.append(rd(i+4))
            steps.append(g)
        return steps
    run(kv_cvt(0)); run(wo_load(order[14])); run(wo_load(order[15]))
    run(num_mfma(0, 0)); run(num_mfma(0, 1))
    run(kv_cvt(1)); run(wo_load(order[16])); run(wo_load(order[17]))
    run(wo_load(order[22])); run(wo_load(order[23]))
    w2s = Stream(w2l[8:], 0.34)
    for hh in range(4):
        work = []
        work += o_ops(hh, 0)
        if hh < 3: work += num_mfma(hh+1, 0)
        work += o_ops(hh, 1)
        if hh < 3: work += num_mfma(hh+1, 1)
        if hh < 2: work += kv_cvt(hh+2) + [wo_load(order[18+2*hh]), wo_load(order[19+2*hh])]
        if hh == 0: run(work)
        else:
            sw = Stream(work, 9)
            sched(A, s2_steps(hh-1), [sw, w2s], flush=[sw])
        A.wait_lg_all()
        A('s_barrier')
    stamp(6)
    run(s2_steps(3))
    tile_store(ACC)
    A.wait_lg_all(force=True)
    A('s_barrier')
    stamp(7)
    A.label('M_up'); A.merge(([], [], False))
    A(f's_add_u32 {s(aFKVR)}, {s(aFKVR)}, {FKV_STR}')
    if stop <= 2: A('s_branch M_fin')
    poll_stats()
    stamp(8)
    UA = [136, 152, 168]; HO = 224; UB = 184
    xl = frag_loads([v(X+4*t,4) for t in range(28)], aXA, sT, 'sc1')
    run(xl[:NX0])
    A(f's_add_u32 {s(aSTA)}, {s(aSTA)}, {ST_STR}')
    A(f's_add_u32 {s(sT+3)}, {s(aHW)}, 4096')
    slot = [SD, SE, SC_, SA, SB, SD, SE]
    vnrl = TMP+11
    sf = stat_final(M, vm_, vve_, vr_)
    sf.append(f'v_mul_f32 {v(vnrl)}, {f32(-LOG2E)}, {v(vr_)}')
    def silu_ops(p):
        acc = UA[p % 3]; H = HO + 4*(p % 4)
        def ch(j):
            e = T2 + (j % 4)*2; q = e + 1
            return [f'v_mul_f32 {v(e)}, {v(acc+j)}, {v(vnrl)}',
                    f'v_mul_f32 {v(q)}, {v(acc+j)}, {v(acc+8+j)}',
                    (f'v_exp_f32 {v(e)}, {v(e)}', 2),
                    f'v_fma_f32 {v(e)}, {v(e)}, {v(vve_)}, {v(vve_)}',
                    (f'v_rcp_f32 {v(e)}, {v(e)}', 2),
                    f'v_mul_f32 {v(acc+j)}, {v(q)}, {v(e)}']
        o = []
        for j0 in range(0, 8, 2):
            for x, y in zip(ch(j0), ch(j0+1)): o += [x, y]
        for d in range(4): o.append(f'v_cvt_pk_bf16_f32 {v(H+d)}, {v(acc+2*d)}, {v(acc+2*d+1)}')
        so = s(aHW) if p < 4 else s(sT+3)
        o.append(f'buffer_store_dwordx4 {v(H,4)}, {v(vL0)}, {WS}, {so} offen offset:{(p%4)*KB}')
        return o
    seq = []
    for t in range(29): seq += [(0, t), (1, t)]
    for p in range(2, 7): seq += [(p, t) for t in range(29)]
    NSEQ = len(seq)
    ub = lambda i: UB + 4*(i % 6)
    rd = lambda i: dsr(ub(i), slot[seq[i][0]] + seq[i][1]*KB)
    for i in range(4): A(rd(i))
    def mstep(i):
        p, t = seq[i]
        g = []
        if i % 2 == 0:
            for u in (i+4, i+5):
                if u < NSEQ: g.append(rd(u))
            g.append(lambda i=i: A.need(v(ub(i),4), v(ub(min(i+1,NSEQ-1)),4)))
        xa = v(X+4*t,4) if t < 28 else v(M,4)
        acc = v(UA[p % 3],16)
        g.append(f'{MF} {acc}, {v(ub(i),4)}, {xa}, {acc if t else 0}')
        return g
    def sync(*toks):
        for tk in toks: A.wait_vm_tok(tk)
        A('s_barrier')
    steps = lambda a_, b_: [mstep(i) for i in range(a_, b_)]
    d13 = lambda p: dma(slot[p], aW13, p*T, 8, sSH8, sT+1, f't{p}')
    dq = lambda sl, m, tok: [l0(it) for it in dma(sl, aWQ, m*T, 8, sSH8, sT+1, tok)]
    vq = Stream(xl[NX0:] + d13(3) + d13(4), 0.5)
    sv = Stream(sf, 2, start=2)
    sched(A, steps(0, 56), [vq, sv], flush=[sv])
    sched(A, steps(56, 64), [vq])
    stamp(13, 2)
    sync()
    vq.items += d13(5) + d13(6)
    sv = Stream(silu_ops(0), 4)
    sched(A, steps(64, 78), [vq, sv])
    sync('t3')
    sched(A, steps(78, 87), [vq, sv], flush=[sv])
    stamp(14, 2)
    def pass_(p, fill, tok_next, extra):
        b = 58 + (p-2)*29
        sv = Stream(fill, 5 if len(fill) > 60 else 3, start=4)
        sched(A, steps(b, b+18), [vq, sv])
        if tok_next: sync(tok_next)
        vq.items += extra
        sched(A, steps(b+18, b+29), [vq, sv], flush=[sv])
    w2rest = w2s.items[w2s.i:]
    n3 = len(w2rest)//3
    pass_(3, silu_ops(1) + silu_ops(2), 't4', dq(SC_, 2, 'wq') + w2rest[:6])
    stamp(15, 2)
    pass_(4, silu_ops(3), 't5', dq(SA, 0, 'wkv') + w2rest[6:12])
    stamp(16, 2)
    pass_(5, silu_ops(4), 't6', dq(SB, 1, 'wkv') + w2rest[12:16])
    pass_(6, silu_ops(5), None, [])
    stamp(17, 2)
    sched(A, [], [], flush=[vq])
    run(silu_ops(6))
    A(f'v_mov_b32 {v(vt0)}, 1')
    A.wait_vm_all()
    publish(flag_store(aFHW, vt0))
    A(f's_add_u32 {s(aFHW)}, {s(aFHW)}, {FH_STR}')
    stamp(9)
    if stop <= 3: A('s_branch M_fin')
    A.wait_lg_all(force=True)
    A('s_barrier')
    A(f's_cmp_ge_u32 {s(sIDX)}, 28')
    A('s_cbranch_scc1 M_next')
    run(w2rest[16:])
    DA = 24; HW = 88; NW = 24; NH0 = 10
    acc = lambda tt, c: DA + (tt*2 + c)*16
    for d in range(8):
        A(f'v_lshlrev_b32 {v(acc(0,0)+2*d)}, 16, {v(vRES+d)}')
        A(f'v_and_b32 {v(acc(0,0)+2*d+1)}, 0xffff0000, {v(vRES+d)}')
    RB = SD
    vRA = 200
    for x in (1, 2, 3):
        A(f's_xor_b32 {s(sT)}, {s(sW)}, {x}')
        A(f's_mul_i32 {s(sT)}, {s(sT)}, {12*KB}')
        A(f's_add_u32 {s(sT)}, {s(sT)}, {RB + (x-1)*4*KB}')
        A(f'v_add_u32 {v(vRA+x)}, {s(sT)}, {v(vL0)}')
    A(f's_mul_i32 {s(sT)}, {s(sW)}, {12*KB}')
    A(f's_add_u32 {s(sT)}, {s(sT)}, {RB}')
    A(f'v_add_u32 {v(vRA)}, {s(sT)}, {v(vL0)}')
    poll_loop([f'buffer_load_dword {v(vP)}, {v(vPH)}, {WS}, {s(aFHR)} offen sc1'],
              [f'v_cmp_ne_u32 {mP}, 0, {v(vP)}'], [f's_cmp_eq_u64 {mP}, exec'])
    acquire()
    stamp(10)
    hreg = lambda i: HW + 4*(i % NW)
    hl = frag_loads([v(hreg(i),4) for i in range(28)], aHR1, sT, 'sc1') + \
         frag_loads([v(hreg(28+i),4) for i in range(28)], aHR0, sT, 'sc1')
    run(hl[:NH0])
    A(f's_add_u32 {s(aFHR)}, {s(aFHR)}, {FH_STR}')
    early = [f'ds_write_b128 {v(vRA+2+c)}, {v(acc(1,c)+4*q,4)} offset:{q*KB}' for c in range(2) for q in range(4)]
    RD = 208
    dsteps = []
    for i in range(56):
        tt = 1 if i < 28 else 0; t = i % 28
        g = []
        for c in (1, 0):
            first = (t == 0) and not (tt == 0 and c == 0)
            g.append(f'{MF} {v(acc(tt,c),16)}, {a((c*28+t)*4,4)}, {v(hreg(i),4)}, {0 if first else v(acc(tt,c),16)}')
        dsteps.append(g)
    vq = Stream(hl[NH0:], 1)
    sched(A, dsteps[:46], [vq, Stream(early, 1, start=34)])
    A.wait_lg_all()
    A('s_barrier')
    rds = [f'ds_read_b128 {v(RD+16*x+4*q,4)}, {v(vRA)} offset:{x*4*KB + q*KB}' for x in (1, 2) for q in range(4)]
    sched(A, dsteps[46:], [Stream(rds, 1)])
    for j in range(16): A(f'v_add_f32 {v(RD+16+j)}, {v(RD+16+j)}, {v(RD+32+j)}')
    for q in range(4): A(f'ds_write_b128 {v(vRA+1)}, {v(acc(0,1)+4*q,4)} offset:{q*KB}')
    A0 = acc(0,0)
    for j in range(0, 16, 2): A(f'v_pk_add_f32 {v(A0+j,2)}, {v(A0+j,2)}, {v(RD+16+j,2)}')
    A.wait_lg_all()
    A('s_barrier')
    stamp(11)
    for q in range(4): A(f'ds_read_b128 {v(RD+4*q,4)}, {v(vRA)} offset:{q*KB}')
    for j in range(0, 16, 2): A(f'v_pk_add_f32 {v(A0+j,2)}, {v(A0+j,2)}, {v(RD+j,2)}')
    A('s_cbranch_vccnz M_final')
    st4 = A.snapshot()
    tile_store(A0)
    stamp(12)
    A.label('M_next'); A.vm = []; A.lg = []; A.hazard_fence()
    def dump_ts():
        if not ts: return
        A.wait_lg_all(force=True)
        A(f's_lshl_b32 {s(sT)}, s2, 2')
        A(f's_add_u32 {s(sT)}, {s(sT)}, {s(sW)}')
        A(f's_lshl_b32 {s(sT)}, {s(sT)}, 1')
        A(f's_add_u32 {s(sT)}, {s(sT)}, {s(sL)}')
        A(f's_mul_i32 {s(sT)}, {s(sT)}, {NS*4}')
        A(f's_add_u32 {s(sT)}, {s(sT)}, {TS}')
        if ts != 4: A(f's_mov_b32 {s(TSB+2*19)}, {s(sMODE)}')
        A('s_mov_b64 exec, 1')
        for i in range(NS):
            A(f'v_mov_b32 {v(W0+i)}, {s(TSB+2*i)}')
            A(f'buffer_store_dword {v(W0+i)}, {v(vL4)}, {WS}, {s(sT)} offen offset:{4*i}')
        A('s_mov_b64 exec, -1')
    A('s_cbranch_vccnz M_fin')
    dump_ts()
    A(f's_mov_b32 {s(sL)}, 1')
    A('s_mov_b64 vcc, -1')
    if stop <= 4: A('s_branch M_end')
    A('s_branch M_loop')
    A.label('M_final'); A.restore(st4); A.hazard_fence()
    for d in range(8): A(f'v_cvt_pk_bf16_f32 {v(vRES+d)}, {v(A0+2*d)}, {v(A0+2*d+1)}')
    A(f'v_and_b32 {v(vt0)}, 31, v0')
    A(f'v_mul_u32_u24 {v(vt0)}, 896, {v(vt0)}')
    A(f'v_bfe_u32 {v(vt1)}, v0, 5, 1')
    A(f'v_lshl_add_u32 {v(vt0)}, {v(vt1)}, 4, {v(vt0)}')
    for u in range(2):
        A(f'v_permlane32_swap_b32 {v(vRES+4*u)}, {v(vRES+4*u+2)}')
        A(f'v_permlane32_swap_b32 {v(vRES+4*u+1)}, {v(vRES+4*u+3)}')
        A(f'buffer_store_dwordx4 {v(vRES+4*u,4)}, {v(vt0)}, {OUT}, {s(sOUT)} offen offset:{32*u}')
    stamp(12)
    A.label('M_fin'); A.vm = []; A.lg = []; A.hazard_fence()
    dump_ts()
    A.label('M_end')
    A('s_endpgm')
    return A
```

```python
KB = 1024
T = 29 * KB
PWQKV = 0x000000
PWO   = 0x180000
PW13  = 0x200000
PW2   = 0x540000
XF    = 0x700000
PQ    = 0x900000
HB    = 0xB00000
ST    = 0x1200000; ST_STR = 0x40000
ZR    = 0x1300000
KV    = ZR;        KV_STR = 0x10000
FH    = ZR + 0x20000; FH_STR = 0x2000
FKV   = ZR + 0x24000; FKV_STR = 0x400
ZR_BYTES = 0x30000
TS    = 0x1400000
WS_BYTES = 0x10000000
```

```python
import sys
sys.path.insert(0, 'gen')
from asmlib import *
from layout import *

NAME = 'interleave_layers__linear_attn_block__glu_gated_swiglu__prompt'
MF = 'v_mfma_f32_32x32x16_bf16'
LOG2E = 0x3fb8aa3b
LN2 = 0x3f317218
ONES = 0x3f803f80
POLL_LIMIT = 400000

def f32(x):
    import struct
    return '0x%08x' % struct.unpack('<I', struct.pack('<f', x))[0]

def srd(A, d, ptr, nbytes):
    A(f's_mov_b32 {s(d)}, {s(ptr)}')
    A(f's_mov_b32 {s(d+1)}, {s(ptr+1)}')
    A(f's_mov_b32 {s(d+2)}, {nbytes}')
    A(f's_mov_b32 {s(d+3)}, 0x00020000')

def gen_pack():
    A = Asm()
    NWG = 310
    A(f's_cmp_ge_u32 s2, {NWG}')
    A('s_cbranch_scc1 P_end')
    A('s_load_dwordx4 s[52:55], s[0:1], 0')
    A('s_load_dwordx2 s[56:57], s[0:1], 16')
    A('s_load_dwordx4 s[60:63], s[0:1], 32')
    A('s_load_dwordx2 s[64:65], s[0:1], 48')
    A('s_load_dwordx2 s[66:67], s[0:1], 72')
    A('v_lshrrev_b32 v2, 6, v0')
    A('v_and_b32 v3, 63, v0')
    A('v_readfirstlane_b32 s16, v2')
    A('v_lshlrev_b32 v1, 4, v3')
    A('v_and_b32 v4, 31, v3')
    A('v_lshrrev_b32 v5, 5, v3')
    srd(A, 8, 66, WS_BYTES)
    A('s_cmp_ge_u32 s2, 246')
    A('s_cbranch_scc1 P_x')
    A('v_mov_b32 v10, -1')
    A('v_mov_b32 v11, -1')
    A('s_mov_b32 s34, 14')
    A('s_mov_b32 s35, 1')
    A('s_cmp_ge_u32 s2, 64')
    A('s_cbranch_scc1 P_not_qkv')
    A('s_and_b32 s30, s2, 3')
    A('s_lshr_b32 s31, s2, 2')
    A('s_cmp_eq_u32 s30, 3')
    A('s_cbranch_scc1 P_zero')
    srd(A, 20, 54, 448*1344*2)
    srd(A, 24, 54, 448*1344*2)
    A('s_mov_b32 s32, 2688')
    A('s_mul_i32 s33, s32, 32')
    A('s_add_u32 s36, s30, 1')
    A('s_cmp_eq_u32 s30, 2')
    A('s_cselect_b32 s36, 0, s36')
    A('s_mul_i32 s36, s36, 896')
    A('s_mul_i32 s37, s31, 56')
    A('s_add_u32 s36, s36, s37')
    A('s_add_u32 s37, s36, 32')
    A('s_mul_i32 s38, s31, 3')
    A('s_add_u32 s38, s38, s30')
    A(f's_mul_i32 s38, s38, {T}')
    A(f's_add_u32 s38, s38, {PWQKV}')
    A('v_cmp_gt_u32 vcc, 28, v4')
    A('v_cndmask_b32 v10, 0, v10, vcc')
    A('v_mov_b32 v11, v10')
    A('s_branch P_go')
    A.label('P_not_qkv'); A.hazard_fence()
    A('s_cmp_ge_u32 s2, 176')
    A('s_cbranch_scc1 P_not_w13')
    A('s_sub_u32 s30, s2, 64')
    srd(A, 20, 60, 448*1792*2)
    srd(A, 24, 62, 448*1792*2)
    A('s_mov_b32 s32, 3584')
    A('s_mul_i32 s33, s32, 32')
    A('s_lshl_b32 s36, s30, 5')
    A('s_mov_b32 s37, s36')
    A(f's_mul_i32 s38, s30, {T}')
    A(f's_add_u32 s38, s38, {PW13}')
    A('s_branch P_go')
    A.label('P_not_w13'); A.hazard_fence()
    A('s_mov_b32 s35, 0')
    A('s_mov_b32 s32, 896')
    A('s_cmp_ge_u32 s2, 190')
    A('s_cbranch_scc1 P_w2')
    A('s_sub_u32 s30, s2, 176')
    srd(A, 20, 56, 448*448*2)
    srd(A, 24, 56, 448*448*2)
    A('s_mov_b32 s33, %d' % (28*896))
    A('s_mov_b32 s34, 16')
    A('s_lshl_b32 s36, s30, 6')
    A('s_add_u32 s37, s36, 32')
    A('s_lshl_b32 s38, s30, 15')
    A(f's_add_u32 s38, s38, {PWO}')
    A('v_cmp_eq_u32 vcc, 0, v5')
    A('v_cndmask_b32 v11, 0, v11, vcc')
    A('s_branch P_go')
    A.label('P_w2'); A.hazard_fence()
    A('s_sub_u32 s30, s2, 190')
    A('s_lshr_b32 s31, s30, 2')
    A('s_and_b32 s30, s30, 3')
    srd(A, 20, 64, 1792*448*2)
    srd(A, 24, 64, 1792*448*2)
    A('s_mov_b32 s33, %d' % (32*896))
    A('s_mul_i32 s36, s30, %d' % (448*896))
    A('s_lshl_b32 s37, s31, 6')
    A('s_add_u32 s36, s36, s37')
    A('s_add_u32 s37, s36, 32')
    A('s_mul_i32 s38, s31, %d' % (112*KB))
    A('s_mul_i32 s39, s30, %d' % (28*KB))
    A('s_add_u32 s38, s38, s39')
    A(f's_add_u32 s38, s38, {PW2}')
    A.label('P_go'); A.hazard_fence()
    A('v_lshrrev_b32 v6, 1, v3')
    A('v_mul_lo_u32 v6, v6, s32')
    A('v_and_b32 v7, 1, v3')
    A('v_lshlrev_b32 v7, 4, v7')
    A('v_add_u32 v6, v6, v7')
    A('v_bfe_u32 v7, v3, 4, 1')
    A('v_lshlrev_b32 v7, 10, v7')
    A('v_bfe_u32 v8, v3, 2, 2')
    A('v_lshl_add_u32 v8, v5, 2, v8')
    A('v_lshl_add_u32 v7, v8, 5, v7')
    A('v_and_b32 v8, 3, v3')
    A('v_lshl_add_u32 v7, v8, 3, v7')
    A('s_lshl_b32 s40, s16, 13')
    A('v_add_u32 v7, s40, v7')
    A('v_mov_b32 v12, 0')
    A(f's_mov_b32 s41, {ONES}')
    for n in range(4):
        A(f's_add_u32 s42, s16, {4*n}')
        A('s_mul_i32 s43, s42, s33')
        A('s_add_u32 s44, s43, s36')
        A('s_add_u32 s45, s43, s37')
        A(f's_add_u32 s46, s40, {n*2048}')
        A('s_mov_b32 m0, s46')
        A('buffer_load_dwordx4 v6, s[20:23], s44 offen lds', tok=('d', n))
        A(f's_add_u32 s46, s40, {n*2048+1024}')
        A('s_mov_b32 m0, s46')
        A('buffer_load_dwordx4 v6, s[24:27], s45 offen lds', tok=('d', n))
    for n in range(4):
        A(f's_add_u32 s42, s16, {4*n}')
        if n == 3:
            A('s_cmp_ge_u32 s42, s34')
            A('s_cbranch_scc1 P_cs')
        A.wait_vm_tok(('d', n))
        b = 16 + 8*n
        for u in range(2):
            for p in range(2):
                A(f'ds_read_b64_tr_b16 {v(b+4*u+2*p,2)}, v7 offset:{n*2048+u*512+p*256}')
        for d in range(8):
            A(f'v_and_b32 {v(b+d)}, {v(b+d)}, {"v11" if d >= 6 else "v10"}')
        A('s_lshl_b32 s43, s42, 11')
        A('s_add_u32 s43, s43, s38')
        A(f'buffer_store_dwordx4 {v(b,4)}, v1, s[8:11], s43 offen')
        A(f'buffer_store_dwordx4 {v(b+4,4)}, v1, s[8:11], s43 offen offset:1024')
        for d in range(8):
            A(f'v_dot2c_f32_bf16 v12, s41, {v(b+d)}')
    A.label('P_cs'); A.hazard_fence()
    A('s_cmp_eq_u32 s35, 0')
    A('s_cbranch_scc1 P_end')
    A('v_lshlrev_b32 v13, 2, v0')
    A('ds_write_b32 v13, v12 offset:32768')
    A.wait_lg_all()
    A('s_barrier')
    A('s_cmp_lg_u32 s16, 0')
    A('s_cbranch_scc1 P_end')
    A('v_lshlrev_b32 v13, 2, v4')
    for q in range(8):
        A(f'ds_read_b32 {v(48+q)}, v13 offset:{32768 + q*128}')
    for q in range(1, 8):
        A(f'v_add_f32 v48, v48, {v(48+q)}')
    A('v_cvt_pk_bf16_f32 v49, v48, v48')
    A('v_and_b32 v50, 0xffff0000, v49')
    A('v_sub_f32 v50, v48, v50')
    A('v_cvt_pk_bf16_f32 v52, v48, v50')
    A('v_and_b32 v53, 0xffff, v49')
    A('v_mov_b32 v54, 0')
    A('v_mov_b32 v55, 0')
    A('v_cmp_eq_u32 vcc, 0, v5')
    A('v_cndmask_b32 v52, 0, v52, vcc')
    A('v_cndmask_b32 v53, 0, v53, vcc')
    A(f's_add_u32 s43, s38, {28*KB}')
    A('buffer_store_dwordx4 v[52:55], v1, s[8:11], s43 offen')
    A('s_branch P_end')
    A.label('P_zero'); A.hazard_fence(); A.vm = []; A.lg = []
    for d in range(4): A(f'v_mov_b32 {v(16+d)}, 0')
    A('v_lshlrev_b32 v6, 4, v0')
    A('s_mul_i32 s43, s31, %d' % (ZR_BYTES // 16))
    A(f's_add_u32 s43, s43, {ZR}')
    for n in range(ZR_BYTES // 16 // 4096):
        A('buffer_store_dwordx4 v[16:19], v6, s[8:11], s43 offen')
        A('s_add_u32 s43, s43, 4096')
    A('s_branch P_end')
    A.label('P_x'); A.hazard_fence(); A.vm = []; A.lg = []
    A('s_sub_u32 s30, s2, 246')
    srd(A, 20, 52, 2048*448*2)
    A('v_mul_u32_u24 v6, 896, v4')
    A('v_lshl_add_u32 v6, v5, 4, v6')
    A('s_mul_i32 s31, s30, %d' % (28*KB))
    A('s_mul_i32 s32, s16, %d' % (7*32))
    A('s_add_u32 s32, s32, s31')
    for t in range(7):
        A(f'buffer_load_dwordx4 {v(16+4*t,4)}, v6, s[20:23], s32 offen offset:{32*t}')
    A('s_mul_i32 s33, s16, %d' % (7*KB))
    A('s_add_u32 s33, s33, s31')
    A(f's_add_u32 s33, s33, {XF}')
    A(f's_mov_b32 s41, {ONES}')
    A('v_mov_b32 v12, 0'); A('v_mov_b32 v13, 0'); A('v_mov_b32 v14, 0')
    for t in range(7):
        b = 16 + 4*t
        A(f'v_permlane32_swap_b32 {v(b)}, {v(b+2)}')
        A(f'v_permlane32_swap_b32 {v(b+1)}, {v(b+3)}')
        if t == 4: A('s_add_u32 s33, s33, 4096')
        A(f'buffer_store_dwordx4 {v(b,4)}, v1, s[8:11], s33 offen offset:{(t%4)*1024}')
        for d in range(4):
            A(f'v_dot2c_f32_bf16 v12, s41, {v(b+d)}')
        for d in range(4):
            A(f'v_dot2c_f32_bf16 v13, {v(b+d)}, {v(b+d)}')
    A('v_permlane32_swap_b32 v12, v13')
    A('v_add_f32 v12, v12, v13')
    A('s_lshl_b32 s34, s30, 12')
    A(f's_add_u32 s34, s34, {ST}')
    A('s_lshl_b32 s35, s16, 2')
    A('s_add_u32 s35, s35, s34')
    A('buffer_store_dword v12, v1, s[8:11], s35 offen')
    for d in range(4): A(f'v_mov_b32 {v(48+d)}, 0')
    A('s_lshl_b32 s35, s16, 10')
    A('s_add_u32 s35, s35, s34')
    for n in range(1, 4):
        A(f's_add_u32 s36, s35, {n*ST_STR}')
        A('buffer_store_dwordx4 v[48:51], v1, s[8:11], s36 offen')
    A('s_cmp_eq_u32 s16, 0')
    A('s_cbranch_scc1 P_end')
    A('buffer_store_dwordx4 v[48:51], v1, s[8:11], s35 offen')
    A.label('P_end')
    A('s_endpgm')
    return A, NWG

KD = """.p2align 6
.amdhsa_kernel {n}
  .amdhsa_next_free_vgpr {v}
  .amdhsa_next_free_sgpr 102
  .amdhsa_accum_offset {a}
  .amdhsa_group_segment_fixed_size 0
  .amdhsa_kernarg_size 80
  .amdhsa_user_sgpr_count 2
  .amdhsa_user_sgpr_kernarg_segment_ptr 1
  .amdhsa_system_sgpr_workgroup_id_x 1
  .amdhsa_float_denorm_mode_32 3
.end_amdhsa_kernel
"""

def assemble(kernels):
    out = ''
    for (n, A, g, b, lds, vg, ac) in kernels:
        out += f'; @launch kernel={n} grid=({g},1,1) block=({b},1,1) lds={lds}\n'
    out += '.amdgcn_target "amdgcn-amd-amdhsa--gfx950"\n.text\n'
    for (n, A, g, b, lds, vg, ac) in kernels:
        out += f'.globl {n}\n.p2align 8\n.type {n},@function\n{n}:\n' + A.text()
    out += '.section .rodata,"a"\n'
    for (n, A, g, b, lds, vg, ac) in kernels:
        out += KD.format(n=n, v=vg, a=ac)
    return out

if __name__ == '__main__':
    P, nwg = gen_pack()
    ks = [('pack_kernel', P, nwg, 256, 34816, 64, 64)]
    try:
        from gen_main import gen_main
        opts = dict(a.split('=') for a in sys.argv[2:])
        M = gen_main(**{k: int(x) for k, x in opts.items()})
        ks.append(('main_kernel', M, 256, 256, 163840, 512, 256))
        print('main stats', M.stats, file=sys.stderr)
    except ImportError:
        pass
    open(sys.argv[1], 'w').write(assemble(ks))
```

```python
import re

REG_RE = re.compile(r'^(-|abs\()?([vas])(\d+)\)?$|^(-|abs\()?([vas])\[(\d+):(\d+)\]\)?$')

def parse_reg(op):
    op = op.strip()
    if op in ('vcc',): return [('s', 106), ('s', 107)]
    if op == 'vcc_lo': return [('s', 106)]
    if op == 'vcc_hi': return [('s', 107)]
    if op == 'exec': return [('s', 126), ('s', 127)]
    if op == 'exec_lo': return [('s', 126)]
    if op == 'exec_hi': return [('s', 127)]
    if op == 'm0': return [('s', 124)]
    m = REG_RE.match(op)
    if not m: return []
    if m.group(2):
        return [(m.group(2), int(m.group(3)))]
    return [(m.group(5), i) for i in range(int(m.group(6)), int(m.group(7)) + 1)]

TRANS = ('v_exp_f32', 'v_log_f32', 'v_rcp_f32', 'v_rsq_f32', 'v_sqrt_f32', 'v_sin_f32', 'v_cos_f32')

class Ins:
    __slots__ = ('text', 'mn', 'cls', 'rd', 'wr', 'ws', 'srcc', 'ab', 'wide_store', 'lds_dma', 'data')
    def __init__(self, text):
        self.text = text
        t = text.split(';')[0].strip()
        parts = t.split(None, 1)
        mn = parts[0]
        self.mn = mn
        rest = parts[1] if len(parts) > 1 else ''
        ops = [o.strip() for o in re.split(r',(?![^\[]*\])', rest)] if rest else []
        mods = []
        if ops:
            sp = ops[-1].split()
            if sp:
                ops[-1] = sp[0]; mods = sp[1:]
        regs = [parse_reg(o) for o in ops]
        self.rd = set(); self.wr = set(); self.ws = 1
        self.srcc = set(); self.ab = set(); self.wide_store = False; self.lds_dma = False; self.data = set()
        R = lambda i: set(regs[i]) if i < len(regs) else set()
        allr = lambda a: set().union(*[set(r) for r in regs[a:]]) if len(regs) > a else set()
        if mn == 's_nop':
            self.cls = 'nop'; self.ws = int(ops[0], 0) + 1
        elif mn.startswith('v_mfma'):
            self.cls = 'mfma'; self.wr = R(0); self.ab = R(1) | R(2); self.srcc = R(3); self.rd = self.ab | self.srcc
        elif mn.startswith('v_'):
            base = mn.replace('_e32', '').replace('_e64', '')
            self.cls = 'dot' if base.startswith('v_dot') else ('trans' if base in TRANS else 'valu')
            if base.startswith('v_permlane') and 'swap' in base:
                self.cls = 'perm'; self.wr = R(0) | R(1); self.rd = R(0) | R(1)
            elif base.startswith('v_cmp'):
                self.wr = R(0); self.rd = allr(1)
            elif base in ('v_add_co_u32', 'v_sub_co_u32', 'v_addc_co_u32', 'v_subb_co_u32'):
                self.wr = R(0) | R(1); self.rd = allr(2)
            elif base in ('v_readfirstlane_b32', 'v_readlane_b32'):
                self.cls = 'rdlane'; self.wr = R(0); self.rd = allr(1)
            else:
                self.wr = R(0); self.rd = allr(1)
                if base in ('v_fmac_f32', 'v_dot2c_f32_bf16', 'v_writelane_b32'): self.rd |= R(0)
                if base == 'v_cndmask_b32' and len(ops) == 3: self.rd |= set(parse_reg('vcc'))
            if any(m.startswith(('row_', 'quad_perm', 'wave_')) for m in mods) or '_dpp' in mn: self.cls = 'dpp'
        elif mn.startswith('ds_'):
            self.cls = 'ds'
            if mn.startswith(('ds_read', 'ds_bpermute', 'ds_permute', 'ds_swizzle')):
                self.wr = R(0); self.rd = allr(1)
            else:
                self.rd = allr(0)
        elif mn.startswith(('buffer_', 'global_')):
            self.cls = 'vmem'
            if mn in ('buffer_inv', 'buffer_wbl2'):
                pass
            elif 'lds' in mods or '_lds_' in mn:
                self.lds_dma = True; self.rd = allr(0) | set(parse_reg('m0'))
            elif '_load' in mn:
                self.wr = R(0); self.rd = allr(1)
            else:
                self.rd = allr(0)
                self.data = R(0) if mn.startswith('buffer_') else R(1)
                if 'x4' in mn or 'x3' in mn: self.wide_store = True
                if 'atomic' in mn and 'sc0' in mods: self.wr = R(0)
        elif mn.startswith(('s_load', 's_buffer_load', 's_memtime', 's_memrealtime')):
            self.cls = 'smem'; self.wr = R(0); self.rd = allr(1)
        elif mn.startswith('s_'):
            self.cls = 'salu'
            if mn.startswith(('s_cmp', 's_cbranch', 's_branch', 's_waitcnt', 's_barrier', 's_endpgm', 's_sleep', 's_setprio', 's_bitcmp')):
                self.rd = allr(0)
            else:
                self.wr = R(0); self.rd = allr(1)
                if 'saveexec' in mn: self.wr |= set(parse_reg('exec')); self.rd |= set(parse_reg('exec'))
        else:
            raise ValueError('unknown instruction: ' + text)

VALU_LIKE = ('valu', 'trans', 'dot', 'perm', 'rdlane', 'dpp')

def need_states(p, c):
    n = 0
    pv = p.cls in VALU_LIKE
    cv = c.cls in VALU_LIKE
    vg = lambda S: {r for r in S if r[0] in 'va'}
    sg = lambda S: {r for r in S if r[0] == 's'}
    if pv:
        w = vg(p.wr)
        if c.cls == 'mfma' and w & c.rd: n = max(n, 3 if p.cls == 'dot' else 2)
        if c.cls == 'perm' and w & c.rd: n = max(n, 2)
        if c.cls == 'dpp' and w & c.rd: n = max(n, 2)
        if c.cls == 'rdlane' and w & c.rd: n = max(n, 1)
        if p.cls == 'trans' and cv and w & c.rd: n = max(n, 1)
        if p.cls == 'dot' and w & (c.rd | c.wr):
            same = (c.mn == p.mn) and (c.wr == p.wr) and not (w & (c.rd - c.wr))
            if not same: n = max(n, 3)
        ws = sg(p.wr)
        if ws:
            if cv and ws & c.rd: n = max(n, 4 if c.cls == 'rdlane' else 2)
            if c.cls == 'vmem' and ws & c.rd: n = max(n, 5)
            if c.cls == 'salu' and ws & c.rd: n = max(n, 1)
            if ws & set(parse_reg('exec')): n = max(n, 5)
    if p.cls == 'mfma':
        passes = 8 if '32x32x16' in p.mn else 4
        raw = {8: 12, 4: 8}[passes] + 1
        ovl = {8: 10, 4: 6}[passes]
        war = {8: 7, 4: 3}[passes]
        if c.cls == 'mfma':
            if p.wr & c.ab: n = max(n, raw)
            if p.wr & c.srcc and not (p.wr == c.srcc and p.mn == c.mn): n = max(n, ovl)
            if p.wr & c.wr and not (p.wr == c.srcc and p.mn == c.mn): n = max(n, raw)
        elif cv or c.cls in ('ds', 'vmem'):
            if p.wr & (c.rd | c.wr): n = max(n, raw)
            if p.srcc & c.wr: n = max(n, war)
    if p.cls == 'salu' and ('s', 124) in p.wr and c.lds_dma: n = max(n, 1)
    if p.cls == 'vmem' and p.wide_store and (p.data & c.wr): n = max(n, 2)
    return n

class Asm:
    def __init__(self):
        self.lines = []
        self.hist = []
        self.vm = []
        self.lg = []
        self.smem_out = False
        self.nlabel = 0
        self.stats = {}
    def raw(self, text):
        self.lines.append(text)
    def comment(self, t):
        self.lines.append('  ; ' + t)
    def newlabel(self, base='L'):
        self.nlabel += 1
        return f'{base}_{self.nlabel}'
    def label(self, name):
        self.lines.append(name + ':')
    def _emit(self, ins):
        self.lines.append('  ' + ins.text)
        self.hist.append(ins)
        if len(self.hist) > 40: self.hist.pop(0)
        self.stats[ins.cls] = self.stats.get(ins.cls, 0) + 1
    def _wait_vm(self, n):
        n = min(n, 63)
        self._emit(Ins(f's_waitcnt vmcnt({n})'))
        self.vm = [e for e in self.vm if e['after'] < n]
    lg_keep = None
    def _wait_lg(self, n):
        if self.smem_out: n = 0
        if self.lg_keep is not None: n = min(n, self.lg_keep)
        n = min(n, 15)
        self._emit(Ins(f's_waitcnt lgkmcnt({n})'))
        self.lg = [e for e in self.lg if e['after'] < n]
        if n == 0: self.smem_out = False
    def wait_vm_tok(self, tok):
        c = [e['after'] for e in self.vm if e['tok'] == tok]
        if c: self._wait_vm(min(c))
    def wait_lg_tok(self, tok):
        c = [e['after'] for e in self.lg if e['tok'] == tok]
        if c: self._wait_lg(min(c))
    def wait_vm_all(self, force=False):
        if self.vm or force: self._wait_vm(0)
    def wait_lg_all(self, force=False):
        if self.lg or force: self._wait_lg(0)
    def blind(self, text):
        ins = Ins(text)
        saved = [(e, e['regs']) for e in self.vm]
        for e in self.vm: e['regs'] = e['regs'] - ins.wr
        self(text)
        for e, r in saved: e['regs'] = r
    def need(self, *ops):
        regs = set()
        for o in ops: regs |= set(parse_reg(o))
        c = [e['after'] for e in self.vm if e['regs'] & regs]
        if c: self._wait_vm(min(c))
        c = [e['after'] for e in self.lg if e['regs'] & regs]
        if c: self._wait_lg(min(c))
    def snapshot(self):
        return ([dict(e) for e in self.vm], [dict(e) for e in self.lg], self.smem_out)
    def merge(self, snap):
        for q, o in ((self.vm, snap[0]), (self.lg, snap[1])):
            mine = {e['id']: e for e in q}
            for e in o:
                if e['id'] in mine: mine[e['id']]['after'] = min(mine[e['id']]['after'], e['after'])
                else: q.append(dict(e))
            q.sort(key=lambda e: -e['after'])
        self.smem_out |= snap[2]
        self.hazard_fence()
    def restore(self, snap):
        self.vm = [dict(e) for e in snap[0]]; self.lg = [dict(e) for e in snap[1]]; self.smem_out = snap[2]
    def hazard_fence(self):
        self._emit(Ins('s_nop 7')); self._emit(Ins('s_nop 5'))
        self.hist = []
    _id = 0
    def __call__(self, text, tok=None):
        ins = Ins(text)
        touch = ins.rd | ins.wr
        c = [e['after'] for e in self.vm if e['regs'] & touch]
        if c: self._wait_vm(min(c))
        c = [e['after'] for e in self.lg if e['regs'] & touch]
        if c: self._wait_lg(min(c))
        dist = 0; need = 0
        for p in reversed(self.hist):
            n = need_states(p, ins)
            if n > dist: need = max(need, n - dist)
            dist += p.ws
            if dist > 20: break
        while need > 0:
            k = min(need, 8)
            self._emit(Ins(f's_nop {k-1}')); need -= k
        self._emit(ins)
        Asm._id += 1
        if ins.cls == 'vmem':
            for e in self.vm: e['after'] += 1
            self.vm.append(dict(regs=set(ins.wr), tok=tok, after=0, id=Asm._id))
        elif ins.cls == 'ds':
            for e in self.lg: e['after'] += 1
            self.lg.append(dict(regs=set(ins.wr), tok=tok, after=0, id=Asm._id))
        elif ins.cls == 'smem':
            for e in self.lg: e['after'] += 1
            self.lg.append(dict(regs=set(ins.wr), tok=tok, after=0, id=Asm._id))
            self.smem_out = True
        return ins
    def text(self):
        return '\n'.join(self.lines) + '\n'

def v(i, n=1): return f'v{i}' if n == 1 else f'v[{i}:{i+n-1}]'
def a(i, n=1): return f'a{i}' if n == 1 else f'a[{i}:{i+n-1}]'
def s(i, n=1): return f's{i}' if n == 1 else f's[{i}:{i+n-1}]'

def interleave(A, main, fill, per):
    fi = 0
    def emit(x):
        if callable(x): x()
        elif isinstance(x, tuple): A(x[0])
        else: A(x)
    cost = lambda x: x[1] if isinstance(x, tuple) else 1
    for m in main:
        for y in (m if isinstance(m, list) else [m]): emit(y)
        b = per
        while fi < len(fill) and b >= cost(fill[fi]):
            b -= cost(fill[fi]); emit(fill[fi]); fi += 1
    while fi < len(fill):
        emit(fill[fi]); fi += 1


def emit(A, x):
    if x is None: return
    if callable(x): x()
    elif isinstance(x, list):
        for y in x: emit(A, y)
    elif isinstance(x, tuple): A(x[0])
    else: A(x)

class Stream:
    def __init__(self, items, per, start=0):
        self.items = list(items); self.per = per; self.start = start; self.credit = 0.0; self.i = 0
    def done(self): return self.i >= len(self.items)

def sched(A, steps, streams, flush=()):
    cost = lambda x: x[1] if isinstance(x, tuple) else 1
    for n, st in enumerate(steps):
        emit(A, st)
        for S in streams:
            if n < S.start: continue
            S.credit += S.per
            while not S.done() and S.credit >= cost(S.items[S.i]) - 1e-9:
                S.credit -= cost(S.items[S.i]); emit(A, S.items[S.i]); S.i += 1
            if S.done(): S.credit = 0
    for S in streams: S.start = max(0, S.start - len(steps))
    for S in flush:
        while not S.done():
            emit(A, S.items[S.i]); S.i += 1
```

```python
KB = 1024
T = 29 * KB
PWQKV = 0x000000
PWO   = 0x180000
PW13  = 0x200000
PW2   = 0x540000
XF    = 0x700000
PQ    = 0x900000
HB    = 0xB00000
CB    = 0x1200000; CB_STR = 14*KB
ST_OFF = 0; ST_STR = 4*KB
FH_OFF = 12*KB
FL_OFF = 13*KB
KV    = 0x1300000; KV_STR = 0x10000
PF    = 0x1340000
PFD   = PF + 48*128
WS_USED = 0x1400000
TS    = 0x1400000
WS_BYTES = 0x10000000
```

```python
from asmlib import Ins, parse_reg, VALU_LIKE

SCC = ('c', 0)
MFLAT = [17]
class Node:
    def __init__(self, items, tok=None, stream=None, rel=0, lat=None, prio=0, blind=False, cb=None, pre=None, xr=(), xw=()):
        self.items = items if isinstance(items, list) else [items]
        self.ins = [Ins(x) for x in self.items]
        self.tok = tok; self.stream = stream; self.rel = rel; self.bias = prio; self.blind = blind; self.cb = cb
        last = self.ins[-1]
        self.cls = last.cls
        self.rd = set(); self.wr = set()
        for i in self.ins:
            self.rd |= (i.rd - self.wr); self.wr |= i.wr
            if i.cls == 'salu':
                if i.mn.startswith(('s_cselect', 's_addc', 's_subb', 's_cbranch')) and SCC not in self.wr: self.rd.add(SCC)
                if not i.mn.startswith(('s_mov', 's_cselect', 's_mul_i32')): self.wr.add(SCC)
        self.rd |= {('x', k) for k in xr}; self.wr |= {('x', k) for k in xw}
        self.pre = pre; self.needwait = False
        self.isw = last.mn.startswith('ds_write_b128')
        self.lat = lat
        self.succ = []; self.npred = 0; self.ready = 0

def latency(p, c, kind):
    if kind == 'raw':
        if p.lat is not None: return p.lat
        if p.cls == 'mfma':
            if c.cls == 'mfma' and p.ins[-1].wr == c.ins[-1].srcc: return 8
            return MFLAT[0]
        if p.cls == 'ds': return 30
        if p.cls == 'vmem': return 100
        if p.cls == 'trans': return 4
        if p.cls in VALU_LIKE:
            if c.cls in ('mfma', 'perm'): return 3
            return 2
        return 1
    if kind == 'ord': return 1
    if kind == 'waw':
        if p.cls == 'mfma' and c.cls == 'mfma' and p.ins[-1].wr == c.ins[-1].srcc: return 8
        return 17 if p.cls == 'mfma' else (latency(p, c, 'raw') if p.cls in ('ds', 'vmem') and not c.blind else 1)
    if p.cls == 'mfma' and (p.ins[-1].srcc & c.wr) and c.cls != 'mfma': return 9
    if p.cls == 'vmem' or p.cls == 'ds': return 3
    return 1

def schedule(A, nodes, vm_gap=16, dsw_gap=13, verbose=False, vm0=0, burst=4, name='', lazy=12, delta=30):
    n = len(nodes)
    lastw = {}; readers = {}; laststream = {}
    for i, x in enumerate(nodes):
        x.idx = i; deps = {}
        def dep(p, kind, r=None):
            if r is not None and r[0] in 'sc' and p.cls not in VALU_LIKE: l = 1
            elif r is not None and kind == 'raw' and r[0] == 'x' and hasattr(p, 'dmalat'): l = p.dmalat
            else: l = latency(p, x, kind)
            l += len(p.items) - 1
            deps[p.idx] = max(deps.get(p.idx, 0), l)
        for r in x.rd:
            if r in lastw:
                dep(lastw[r], 'raw', r)
                if lastw[r].cls in ('ds', 'vmem') and r[0] in 'va': x.needwait = True
        for r in x.wr:
            if r == SCC and SCC not in x.rd:
                for p in readers.get(r, []): dep(p, 'war', r)
                continue
            if r in lastw: dep(lastw[r], 'ord' if r[0] == 'x' else 'waw', r)
            for p in readers.get(r, []):
                if p is not x: dep(p, 'war', r)
        if x.stream is not None and x.stream in laststream:
            deps[laststream[x.stream].idx] = max(deps.get(laststream[x.stream].idx, 0), 1)
        assert SCC not in x.rd, 'keep SCC producer and consumer in one node: ' + str(x.items)
        for r in x.rd: readers.setdefault(r, []).append(x)
        for r in x.wr:
            lastw[r] = x; readers[r] = []
        if x.stream is not None: laststream[x.stream] = x
        x.npred = len(deps)
        for pi, l in deps.items(): nodes[pi].succ.append((x, l))
    for x in reversed(nodes):
        x.cp = max([l + c.cp for c, l in x.succ], default=len(x.items)) + x.bias
    avail = [x for x in nodes if x.npred == 0]
    t = 0; mf_free = 0; vm_clk = vm0; dsw_free = 0; prev = 'mfma'; done = 0
    waited = set()
    order = []
    while done < n:
        cand = [x for x in avail if x.ready <= t and x.rel <= t]
        def ok(x):
            if x.cls == 'mfma': return mf_free <= t
            if x.cls == 'vmem': return vm_clk - (t + len(x.items) - 1) <= burst * vm_gap
            if x.isw: return dsw_free <= t
            if x.cls == 'dot' or x.ins[-1].mn.startswith('v_pk_'): return mf_free <= t
            return True
        cand = [x for x in cand if ok(x)]
        pick = None
        mf = [x for x in cand if x.cls == 'mfma']
        mem = [x for x in cand if x.cls in ('ds', 'vmem', 'salu', 'smem')]
        val = [x for x in cand if x.cls in VALU_LIKE]
        key = lambda x: (-x.cp, x.idx)
        topv = max([x.cp for x in val], default=-1)
        def mft(x):
            return max(x.ready, x.rel, mf_free + ((lazy - 8) if topv > x.cp + delta else 0))
        mf = [x for x in mf if mft(x) <= t]
        nxt = [mft(x) for x in avail if x.cls == 'mfma']
        room = (min(nxt) - t) if nxt else 99
        if nxt and any(x.needwait and mft(x) == min(nxt) for x in avail if x.cls == 'mfma'): room -= 1
        if room <= 0 and not mf:
            t += 1
            continue
        if mf: pick = min(mf, key=key)
        elif prev != 'valu' and mem:
            fit = [x for x in mem if len(x.items) <= max(room, 1) or room > 8]
            pick = min(fit or mem, key=key)
            if val and prev != 'mfma' and min(val, key=key).cp > pick.cp + 40 and room <= 8: pick = min(val, key=key)
        elif val:
            pick = min(val, key=key)
            urgent = [x for x in mem if x.cp > pick.cp + 6 and (room > 8 or room >= 3 + len(x.items))]
            if urgent and room > 8: pick = min(urgent, key=key)
            elif pick.cls == 'trans' and room == 1:
                alt = [x for x in val if x.cls != 'trans']
                if alt: pick = min(alt, key=key)
        elif mem:
            sal = [x for x in mem if x.cls == 'salu']
            if room > 8 or room >= 3 + 1: pick = min(mem, key=key)
            elif sal: pick = min(sal, key=key)
        if pick is None:
            t += 1
            continue
        x = pick
        cost = len(x.items)
        if x.cls in ('ds', 'vmem') and prev == 'valu': cost += 2
        if x.cls in VALU_LIKE and prev == 'mfma': t += 1
        if x.cls == 'trans': cost += 1
        x.t = t
        if x.cls == 'mfma': mf_free = t + 8
        extra = 0
        if x.cls == 'vmem':
            vm_clk = max(vm_clk, t + cost - 1) + vm_gap; extra = vm_clk - vm_gap - (t + cost - 1)
        if x.isw: dsw_free = t + dsw_gap
        order.append(x); avail.remove(x); done += 1
        for c, l in x.succ:
            c.ready = max(c.ready, t + l + (extra if l > 20 else 0)); c.npred -= 1
            if c.npred == 0: avail.append(c)
        t += cost
        prev = 'mfma' if x.cls == 'mfma' else ('valu' if x.cls in VALU_LIKE else ('mem' if prev != 'valu' or x.cls != 'salu' else 'valu'))
    for x in order:
        if x.pre: x.pre()
        for k, it in enumerate(x.items):
            if k == len(x.items) - 1:
                if x.blind: A.blind(it)
                else: A(it, tok=x.tok)
            else: A(it)
        if x.cb: x.cb()
    if verbose: print('region', name, n, 'nodes', t, 'slots', sum(1 for x in nodes if x.cls == 'mfma'), 'mfma')
    return t
```

```python
import sys
sys.path.insert(0, 'gen')
from asmlib import *
from layout import *
from lsched import Node as N, schedule, MFLAT
import struct

NAME = 'interleave_layers__linear_attn_block__glu_gated_swiglu__prompt'
MF = 'v_mfma_f32_32x32x16_bf16'
ONES = 0x3f803f80
POLL_LIMIT = 300000
def f32(x): return '0x%08x' % struct.unpack('<I', struct.pack('<f', x))[0]
LOG2E = 1.4426950408889634
LN2 = 0.6931471805599453
WS = 's[8:11]'; OUT = 's[12:15]'
sW, sIDX, sC16, sSLOT = 16, 17, 18, 19
sSH8, sSH15, sONES, sLN2 = 20, 21, 22, 23
aXA, aCBA, aPQW, aKVW, aFLW, aFLR, aWO, aKVR, aPQR, aXO, aSTO, aHW, aFHW, aFHR, aHR0, aHR1, aWQ, aW13, aW2a, aW2b = range(24, 44)
sXCC, sGRP, sCNT, sOUT = 44, 45, 46, 47
mK = 's[48:49]'; mZ = 's[50:51]'; mLO = 's[52:53]'; mP = 's[54:55]'
sT = 56
JA = 's[60:63]'; JB = 's[64:67]'; XS = 's[68:71]'; DBG = 's[72:75]'
jP, jRS, jNG, jCS, jOA, jOB, jDST, jLB = range(76, 84)
NS = 21
def tsreg(i): return 100 if i == 0 else (60 + 2*(i-1) if i <= 12 else 84 + 2*(i-13))
SA = 0; SB = T; MISC = 2*T; SC_ = 2*T + 15360; SD = SC_ + T; SE = SD + T
RARR = MISC + 8192
vCI = 0
vL0, vL4, vPH, vRR, vRW = 1, 2, 3, 4, 5
vP = 6
vt0, vt1, vL1, vL2, vc0, vc1 = 10, 11, 12, 13, 14, 15
vRES = 16
W0 = 24

def gen_main(ts=0, fast=1, nxa=8, nxe=8, tlb=0, cwarm=1, h1=0, PDS=10, vb=0, rounds=4, xlat=70, kvlat=130, lazy=13):
    A = Asm()
    def stamp(i, lvl=1):
        if ts & lvl: A(f'{"s_memtime" if ts & 4 else "s_memrealtime"} {s(tsreg(i),2)}')
    def lds(off):
        return (v((vL0, vL1, vL2)[off >> 16]), off & 0xffff)
    def dsr(dst, off):
        b, o = lds(off)
        return f'ds_read_b128 {v(dst,4)}, {b} offset:{o}'
    def run(x): emit(A, x)
    def frag_loads(dsts, sbase, st, sc='', tok=None, base=0, selfc=False, blind=False):
        out = []
        for n, d in enumerate(dsts):
            it = []
            off = base + (n//4)*4*KB
            if off and (n % 4 == 0 or selfc):
                it.append(f's_add_u32 {s(st)}, {s(sbase)}, {off}')
            so = s(st) if off else s(sbase)
            txt = f'buffer_load_dwordx4 {d}, {v(vL0)}, {WS}, {so} offen offset:{(n%4)*KB} {sc}'
            it.append((lambda txt=txt: A.blind(txt)) if blind else (lambda txt=txt: A(txt, tok=tok)))
            out.append(it)
        return out
    def dma(ldsbase, sbase, goff, n, ssh, st, tok):
        out = []
        for i in range(n):
            it = []
            if i % 4 == 0:
                it.append(f's_add_u32 {s(st)}, {s(sbase)}, {s(ssh)}')
                if goff + i*KB: it.append(f's_add_u32 {s(st)}, {s(st)}, {goff + i*KB}')
                it.append(f's_add_u32 m0, {s(ssh)}, {ldsbase + i*KB}')
            it.append((lambda i=i: A(f'buffer_load_dwordx4 {v(vL0)}, {WS}, {s(st)} offen offset:{(i%4)*KB} sc1 lds', tok=tok)))
            out.append(it)
        return out
    def poll_loop(loads, reduce_, check):
        L = A.newlabel('Lpoll'); D = A.newlabel('Lpd')
        A(f's_mov_b32 {s(sCNT)}, 0')
        A.label(L)
        run(loads)
        A(f's_add_u32 {s(sCNT)}, {s(sCNT)}, 1')
        A.wait_vm_all()
        run(reduce_)
        A(f's_cmp_gt_u32 {s(sCNT)}, {POLL_LIMIT}')
        A(f's_cbranch_scc1 {D}')
        run(check)
        A(f's_cbranch_scc0 {L}')
        A.label(D)
    slow_tail = []
    def acquire():
        S = A.newlabel('Lacq'); R = A.newlabel('Lacqr')
        A(f's_cbranch_vccz {S}')
        A.label(R)
        slow_tail.append([S + ':', '  buffer_inv sc1', '  s_waitcnt vmcnt(0)', f'  s_branch {R}'])
    def publish(store_fn):
        S = A.newlabel('Lpub'); R = A.newlabel('Lpubr')
        A(f's_cbranch_vccz {S}')
        n0 = len(A.lines)
        store_fn('')
        body = [x.rstrip() + (' sc1' if 'buffer_store' in x else '') for x in A.lines[n0:]]
        A.label(R)
        slow_tail.append([S + ':', '  buffer_wbl2 sc1', '  s_waitcnt vmcnt(0)'] + body + [f'  s_branch {R}'])
    def flag_store(soff, val, off=0, srd=WS):
        def f(sc):
            A('s_mov_b64 exec, 1')
            A(f'buffer_store_dword {v(val)}, {v(vL4)}, {srd}, {soff} offen offset:{off} {sc}')
            A('s_mov_b64 exec, -1')
        return f
    STR = 208
    def poll_stats(n):
        A(f's_add_u32 {s(sT+3)}, {s(aCBA)}, {ST_OFF + (n-1)*ST_STR}')
        lo = [f'buffer_load_dwordx4 {v(STR+4*q,4)}, {v(vL0)}, {WS}, {s(sT+3)} offen offset:{q*KB} sc1' for q in range(4)]
        red = [f'v_min3_u32 {v(vP)}, {v(STR)}, {v(STR+1)}, {v(STR+2)}',
               f'v_min3_u32 {v(vP+1)}, {v(STR+3)}, {v(STR+4)}, {v(STR+5)}',
               f'v_min3_u32 {v(vP+2)}, {v(STR+6)}, {v(STR+7)}, {v(STR+8)}',
               f'v_min3_u32 {v(vP+3)}, {v(STR+9)}, {v(STR+10)}, {v(STR+11)}',
               f'v_min3_u32 {v(vP)}, {v(vP)}, {v(STR+12)}, {v(STR+13)}',
               f'v_min3_u32 {v(vP+1)}, {v(vP+1)}, {v(vP+2)}, {v(vP+3)}',
               f'v_min_u32 {v(vP)}, {v(vP)}, {v(vP+1)}',
               f'v_cmp_ne_u32 {mP}, 0, {v(vP)}']
        poll_loop(lo, red, [f's_cmp_eq_u64 {mP}, exec'])
        acquire()
    def stat_sum(vm):
        o = []
        for c in range(1, 7): o.append(f'v_add_f32 {v(STR)}, {v(STR)}, {v(STR+c)}')
        for c in range(8, 14): o.append(f'v_add_f32 {v(STR+7)}, {v(STR+7)}, {v(STR+c)}')
        o.append(f'v_add_f32 {v(vm)}, {v(STR)}, {v(STR+7)}')
        return o
    def stat_tail(M, vm, vve, vr):
        return [f'v_mov_b32 {v(vve)}, {v(vm)}',
                f'v_mov_b32 {v(M+2)}, 0',
                f'v_permlane32_swap_b32 {v(vm)}, {v(vve)}',
                f'v_mul_f32 {v(vm)}, {f32(-1.0/448)}, {v(vm)}',
                f'v_mul_f32 {v(vve)}, {f32(1.0/448)}, {v(vve)}',
                f'v_cvt_pk_bf16_f32 {v(M)}, {v(vm)}, {v(vm)}',
                f'v_fma_f32 {v(vve)}, -{v(vm)}, {v(vm)}, {v(vve)}',
                f'v_and_b32 {v(M+1)}, 0xffff0000, {v(M)}',
                f'v_max_f32 {v(vve)}, 0, {v(vve)}',
                f'v_sub_f32 {v(M+1)}, {v(vm)}, {v(M+1)}',
                f'v_add_f32 {v(vve)}, {f32(1e-5)}, {v(vve)}',
                f'v_cvt_pk_bf16_f32 {v(M+1)}, {v(M+1)}, {v(M+2)}',
                (f'v_rsq_f32 {v(vr)}, {v(vve)}', 2),
                f'v_mov_b32 {v(M+2)}, {v(M)}',
                f'v_mov_b32 {v(M+3)}, {v(M+1)}']
    def tile_store(ACC, n):
        for d in range(4): A(f'v_cvt_pk_bf16_f32 {v(vRES+d)}, {v(ACC+2*d)}, {v(ACC+2*d+1)}')
        xs = 'sc1' if n == 1 else ''
        A(f'buffer_store_dwordx4 {v(vRES,4)}, {v(vL0)}, {WS}, {s(aXO)} offen {xs}')
        for d in range(4, 8): A(f'v_cvt_pk_bf16_f32 {v(vRES+d)}, {v(ACC+2*d)}, {v(ACC+2*d+1)}')
        A(f'buffer_store_dwordx4 {v(vRES+4,4)}, {v(vL0)}, {WS}, {s(aXO)} offen offset:1024 {xs}')
        A(f'v_mov_b32 {v(vt0)}, 0'); A(f'v_mov_b32 {v(vt1)}, 0')
        for d in range(8): A(f'v_dot2c_f32_bf16 {v(vt0)}, {s(sONES)}, {v(vRES+d)}')
        for d in range(8): A(f'v_dot2c_f32_bf16 {v(vt1)}, {v(vRES+d)}, {v(vRES+d)}')
        A(f's_add_u32 {s(sT)}, {s(aSTO)}, {(n-1)*ST_STR}')
        A(f'v_permlane32_swap_b32 {v(vt0)}, {v(vt1)}')
        A(f'v_add_f32 {v(vt0)}, {v(vt0)}, {v(vt1)}')
        A(f'v_or_b32 {v(vt0)}, 1, {v(vt0)}')
        A.wait_vm_all()
        publish(lambda sc: A(f'buffer_store_dword {v(vt0)}, {v(vL0)}, {WS}, {s(sT)} offen {sc}'))
    def dump_ts(l):
        if not ts: return
        A.wait_lg_all(force=True)
        A(f's_lshl_b32 {s(sT)}, s2, 2')
        A(f's_add_u32 {s(sT)}, {s(sT)}, {s(sW)}')
        A(f's_mul_i32 {s(sT)}, {s(sT)}, {2*NS*4}')
        A(f's_add_u32 {s(sT)}, {s(sT)}, {TS + l*NS*4}')
        A('s_mov_b64 exec, 1')
        for i in range(NS):
            A(f'v_mov_b32 {v(W0+i)}, {s(tsreg(i))}')
            A(f'buffer_store_dword {v(W0+i)}, {v(vL4)}, {WS}, {s(sT)} offen offset:{4*i}')
        A('s_mov_b64 exec, -1')

    X = W0; AK = 136; AV = 152; AQ = 168; WB = 184; M = 208; TMP = 212; RR = 224; RL = 240
    vm_, vve_, vr_, vrl_ = TMP+8, TMP+9, TMP+10, TMP+11
    T2 = TMP
    NX0 = 8
    t0, t1, t2, t3 = sT, sT+1, sT+2, sT+3
    tta, tto, cto = 4, 5, 6

    JST = 128*KB; JH = 14*KB
    A.label('M_start')
    A('s_cmp_ge_u32 s2, 256')
    A('s_cbranch_scc1 M_end')
    stamp(0, 255)
    KP = 24
    A(f's_load_dwordx8 {s(KP,8)}, s[0:1], 0')
    A(f's_load_dwordx8 {s(KP+8,8)}, s[0:1], 32')
    A(f's_load_dwordx4 {s(KP+16,4)}, s[0:1], 64')
    A('s_getpc_b64 s[64:65]')
    A.label('M_pc')
    A('s_sub_u32 s64, s64, M_pc-M_start')
    A('s_subb_u32 s65, s65, 0')
    A('s_mov_b32 s66, M_last-M_start')
    A('s_mov_b32 s67, 0x00020000')
    A(f's_lshr_b32 {s(sIDX)}, s2, 3')
    A(f's_lshl_b32 {s(t2)}, {s(sIDX)}, 12')
    A(f'v_lshl_add_u32 {v(vt0)}, v0, 4, {s(t2)}')
    if cwarm: A.blind(f'buffer_load_dwordx4 {v(vP,4)}, {v(vt0)}, {JB}, 0 offen')
    if ts:
        for i_ in range(84, 100): A(f's_mov_b32 {s(i_)}, 0')
    A(f's_and_b32 {s(sGRP)}, s2, 7')
    A(f's_and_b32 {s(sC16)}, {s(sIDX)}, 15')
    A(f'v_lshrrev_b32 {v(vt0)}, 6, v0')
    A(f'v_and_b32 {v(vt1)}, 63, v0')
    A(f'v_readfirstlane_b32 {s(sW)}, {v(vt0)}')
    vI, vG, vMA, vMB, vJO, vJR, vCS, vXO = 200, 201, 202, 203, 204, 205, 206, 207
    ZR_ = 184; vZO = 194; vRDY = 193
    def sel(dst, q, w13, w2, wo):
        big = lambda x: isinstance(x, int) and not -16 <= x <= 64
        A('s_cmp_ge_u32 s2, 216')
        if big(wo) and big(w2) and wo != w2:
            A(f's_mov_b32 {s(dst)}, {w2}'); A(f's_cselect_b32 {s(dst)}, {wo}, {s(dst)}')
        else: A(f's_cselect_b32 {s(dst)}, {wo}, {w2}')
        A('s_cmp_lt_u32 s2, 160'); A(f's_cselect_b32 {s(dst)}, {w13}, {s(dst)}')
        A('s_cmp_lt_u32 s2, 48');  A(f's_cselect_b32 {s(dst)}, {q}, {s(dst)}')
    sel(jP, 2688, 3584, 896, 896)
    A(f'v_lshrrev_b32 {v(vJO)}, 3, {v(vt1)}')
    A(f'v_mul_lo_u32 {v(vJO)}, {v(vJO)}, {s(jP)}')
    A(f'v_and_b32 {v(vt0)}, 7, {v(vt1)}')
    A(f'v_lshl_add_u32 {v(vJO)}, {v(vt0)}, 4, {v(vJO)}')
    jJ, jR, jC = 44, 46, 47
    sel(3, 0, 48, 160, 216)
    A(f's_sub_u32 {s(jJ)}, s2, s3')
    sel(3, 2, 2, 3, 1)
    A(f's_lshr_b32 {s(jC)}, {s(jJ)}, s3')
    A(f's_lshl_b32 s4, {s(jC)}, s3')
    A(f's_sub_u32 {s(jR)}, {s(jJ)}, s4')
    A(f's_mul_i32 {s(t1)}, {s(jC)}, 11')
    A(f's_lshr_b32 {s(t1)}, {s(t1)}, 5')
    A(f's_mul_i32 {s(t0)}, {s(t1)}, 3')
    A(f's_sub_u32 {s(t0)}, {s(jC)}, {s(t0)}')
    A(f's_add_u32 s3, {s(t0)}, 1')
    A(f's_cmp_eq_u32 {s(t0)}, 2')
    A('s_cselect_b32 s3, 0, s3')
    A('s_mul_i32 s3, s3, 896')
    A(f's_mul_i32 s4, {s(t1)}, 224')
    A('s_add_u32 s3, s3, s4')
    A(f's_lshl_b32 s4, {s(jC)}, 7')
    sel(jOA, 's3', 's4', 's4', 's4')
    sel(3, 112*2688, 112*3584, 224*896, 224*896)
    A(f's_mul_i32 s3, s3, {s(jR)}')
    A(f's_add_u32 {s(jOA)}, {s(jOA)}, s3')
    sel(jOB, 128, 0, 112*896, 112*896)
    A(f's_add_u32 {s(jOB)}, {s(jOB)}, {s(jOA)}')
    A(f's_lshl_b32 {s(jRS)}, {s(jP)}, 3')
    sel(62, 448*1344*2, 448*1792*2, 1792*448*2, 448*448*2)
    A('s_cmp_ge_u32 s2, 230')
    A('s_cselect_b32 s62, 0, s62')
    A('s_mov_b32 s63, 0x00020000')
    A(f's_cmp_ge_u32 {s(sW)}, 2')
    A(f's_cselect_b32 {s(jOA)}, {s(jOB)}, {s(jOA)}')
    A(f's_cselect_b32 s5, 2, 0')
    A(f's_and_b32 s3, {s(sW)}, 1')
    A(f's_mul_i32 s4, s3, {s(jRS)}')
    A('s_mul_i32 s4, s4, 7')
    A(f's_add_u32 {s(jOA)}, {s(jOA)}, s4')
    A(f's_mul_i32 {s(jLB)}, {s(sW)}, {7*KB}')
    A(f's_add_u32 {s(jLB)}, {s(jLB)}, {JST}')
    A('s_cmp_lg_u32 s5, 0')
    A(f's_cselect_b32 s3, {s(KP+10)}, {s(KP+8)}'); A(f's_cselect_b32 s4, {s(KP+11)}, {s(KP+9)}')
    sel(60, s(KP+2), 's3', s(KP+12), s(KP+4)); sel(61, s(KP+3), 's4', s(KP+13), s(KP+5))
    A(f's_mov_b32 s8, {s(KP+18)}'); A(f's_mov_b32 s9, {s(KP+19)}')
    A(f's_mov_b32 s10, {WS_BYTES}'); A('s_mov_b32 s11, 0x00020000')
    A('s_cmp_eq_u32 s2, 255')
    A(f's_cselect_b32 s3, 0, {1 << 30}')
    A(f'v_lshl_add_u32 {v(vZO)}, v0, 4, s3')
    for d in range(4): A(f'v_mov_b32 {v(ZR_+d)}, 0')
    A('s_cbranch_scc0 J_noz')
    for n in range(3):
        A(f's_mov_b32 s3, {PF + n*4096}')
        A(f'buffer_store_dwordx4 {v(ZR_,4)}, {v(vZO)}, {WS}, s3 offen sc1')
    A.label('J_noz')
    for n in range(7):
        if n: A(f's_add_u32 {s(jOA)}, {s(jOA)}, {s(jRS)}')
        A(f's_add_u32 m0, {s(jLB)}, {n*KB}')
        A(f'buffer_load_dwordx4 {v(vJO)}, {JA}, {s(jOA)} offen lds', tok='job')
    stamp(19, 8)
    for d_, k_ in ((68, 0), (72, 16), (12, 14)):
        A(f's_mov_b32 {s(d_)}, {s(KP+k_)}'); A(f's_mov_b32 {s(d_+1)}, {s(KP+k_+1)}')
    A(f's_mov_b32 s70, {2048*448*2}'); A('s_mov_b32 s71, 0x00020000')
    A('s_mov_b32 s74, 256'); A('s_mov_b32 s75, 0x00020000')
    A(f's_lshr_b32 s3, {s(sIDX)}, 4')
    A('s_lshl_b32 s3, s3, 2')
    A(f's_lshl_b32 s7, {s(sGRP)}, 3')
    A(f's_add_u32 {s(tta)}, s3, s7')
    A(f's_add_u32 {s(tta)}, {s(tta)}, {s(sW)}')
    A(f's_mul_i32 {s(aXA)}, {s(tta)}, {28*KB}')
    A(f's_mul_i32 {s(jNG)}, {s(sW)}, {28*KB}')
    vXA, vXB = 198, 199
    A(f'v_lshrrev_b32 {v(vI)}, 3, {v(vt1)}')
    A(f'v_lshrrev_b32 {v(vG)}, 4, {v(vt1)}')
    A(f'v_xor_b32 {v(vt0)}, {v(vt0)}, {v(vG)}')
    A(f'v_mul_u32_u24 {v(vXA)}, 896, {v(vI)}')
    A(f'v_xor_b32 {v(vG)}, 4, {v(vt0)}')
    A(f'v_lshl_add_u32 {v(vXB)}, {v(vG)}, 4, {v(vXA)}')
    A(f'v_lshl_add_u32 {v(vXA)}, {v(vt0)}, 4, {v(vXA)}')
    xraw = []
    for b_ in range(7):
        for rg in range(4):
            xraw.append([f's_add_u32 {s(jLB)}, {s(aXA)}, {rg*8*896 + b_*128}',
                         f's_add_u32 m0, {s(jNG)}, {(b_*4+rg)*KB}',
                         (lambda rg=rg, b_=b_: A(f'buffer_load_dwordx4 {v(vXB if rg & 1 else vXA)}, {XS}, {s(jLB)} offen lds', tok=('x', b_)))])
    vDJ, vD8, vDC = 195, 196, 197
    def params():
        A(f'v_and_b32 {v(vI)}, 31, {v(vt1)}')
        A(f'v_lshrrev_b32 {v(vG)}, 5, {v(vt1)}')
        A(f'v_lshlrev_b32 {v(vL0)}, 4, {v(vt1)}')
        A(f'v_lshlrev_b32 {v(vL4)}, 2, {v(vt1)}')
        A(f'v_lshlrev_b32 {v(vt0)}, 20, {v(vI)}')
        A(f'v_min_u32 {v(vt0)}, {WS_USED - 0x100000}, {v(vt0)}')
        A(f's_mov_b32 {s(t2)}, {0x100000 - 128}')
        if tlb: A.blind(f'buffer_load_dword {v(vP)}, {v(vt0)}, {WS}, {s(t2)} offen sc1')
        A(f's_lshl_b32 s3, {s(t1)}, 2')
        A(f's_add_u32 s3, s3, {s(sW)}')
        A('s_mul_i32 s3, s3, 3')
        A(f's_add_u32 s3, s3, {s(t0)}')
        A(f's_mul_i32 s3, s3, {T}')
        assert PWQKV == 0
        A(f's_lshl_b32 s5, {s(jC)}, 2')
        A(f's_add_u32 s5, s5, {s(sW)}')
        A(f's_mul_i32 s5, s5, {T}')
        A(f's_add_u32 s5, s5, {PW13}')
        sel(jCS, 's3', 's5', 0, 0)
        A(f's_mul_i32 s6, {s(jR)}, {7*KB}')
        A(f's_add_u32 {s(jDST)}, {s(jCS)}, s6')
        A(f's_lshl_b32 s3, {s(jC)}, 1')
        A(f's_and_b32 s5, {s(sW)}, 1')
        A('s_add_u32 s3, s3, s5')
        A(f's_lshl_b32 s5, {s(jR)}, 1')
        A(f's_lshr_b32 s6, {s(sW)}, 1')
        A('s_add_u32 s5, s5, s6')
        A(f's_mul_i32 s6, s3, {112*KB}')
        A(f's_mul_i32 {s(t2)}, s5, {7*KB}')
        A(f's_add_u32 s6, s6, {s(t2)}')
        A(f's_add_u32 s6, s6, {PW2}')
        A('s_lshl_b32 s3, s3, 15')
        A('s_lshl_b32 s5, s5, 13')
        A('s_add_u32 s3, s3, s5')
        A(f's_add_u32 s3, s3, {PWO}')
        A(f's_mov_b32 s5, {s(jDST)}')
        sel(jDST, 's5', 's5', 's6', 's3')
        A('s_cmp_ge_u32 s2, 230')
        A(f's_cselect_b32 s3, {1 << 30}, 0')
        A(f's_cselect_b32 {s(jDST)}, 0, {s(jDST)}')
        A(f'v_add_u32 {v(vDJ)}, s3, {v(vL0)}')
        sel(3, 1 << 30, 1 << 30, 1 << 30, 0)
        A(f'v_or_b32 {v(vD8)}, s3, {v(vDJ)}')
        sel(3, 0, 0, 1 << 30, 1 << 30)
        A(f'v_lshlrev_b32 {v(vDC)}, 30, {v(vG)}')
        A(f'v_or3_b32 {v(vDC)}, s3, {v(vDC)}, {v(vL0)}')
        A(f's_lshr_b32 s3, {s(jR)}, 1'); A('s_lshl_b32 s3, s3, 9')
        A(f's_and_b32 s5, {s(jR)}, 1'); A('s_lshl_b32 s5, s5, 3')
        A('s_add_u32 s3, s3, s5')
        A(f's_add_u32 {s(jCS)}, {s(jCS)}, s3')
        A(f's_add_u32 {s(jCS)}, {s(jCS)}, {28*KB}')
        sel(3, 28, 32, 32, 32)
        A(f'v_cmp_gt_u32 {mP}, s3, {v(vI)}')
        A(f'v_cndmask_b32 {v(vMA)}, 0, -1, {mP}')
        sel(3, 2, 2, 2, 1)
        A(f'v_cmp_gt_u32 {mP}, s3, {v(vG)}')
        A(f'v_cndmask_b32 {v(vMB)}, 0, {v(vMA)}, {mP}')
        A(f's_mul_i32 s3, {s(sW)}, 56')
        A(f's_lshl_b32 s5, {s(sW)}, 5')
        A(f's_lshl_b32 s6, {s(sW)}, 6')
        sel(jOB, 's3', 's5', 's6', 's6')
        sel(3, 32, 128, 32, 32)
        A(f'v_bfe_u32 {v(vt0)}, {v(vt1)}, 4, 1')
        A(f'v_mul_lo_u32 {v(vJR)}, {v(vt0)}, s3')
        A(f'v_and_b32 {v(vt0)}, 3, {v(vt1)}')
        A(f'v_lshl_add_u32 {v(vJR)}, {v(vt0)}, 3, {v(vJR)}')
        A(f'v_add_u32 {v(vJR)}, {s(jOB)}, {v(vJR)}')
        A(f'v_lshrrev_b32 {v(vt0)}, 7, {v(vJR)}')
        A(f'v_and_b32 {v(vJR)}, 127, {v(vJR)}')
        A(f'v_mul_u32_u24 {v(vt0)}, {JH}, {v(vt0)}')
        A(f'v_add3_u32 {v(vJR)}, {v(vJR)}, {v(vt0)}, {v(vL2)}') if False else A(f'v_add_u32 {v(vJR)}, {v(vJR)}, {v(vt0)}')
        A(f'v_bfe_u32 {v(vt0)}, {v(vt1)}, 2, 2')
        A(f'v_lshl_add_u32 {v(vt0)}, {v(vG)}, 2, {v(vt0)}')
        A(f'v_lshl_add_u32 {v(vJR)}, {v(vt0)}, 7, {v(vJR)}')
        A(f'v_add_u32 {v(vJR)}, {JST}, {v(vJR)}')
        sel(jRS, 32*128, 32*128, 32*128, 28*128)
        A(f's_mov_b32 {s(sONES)}, {ONES}')
        A(f'v_mov_b32 {v(vCS)}, 0')
        A(f's_mov_b32 {s(t1)}, s7')
    B = Asm(); realA = A.__dict__.copy()
    A.lines = []; A.hist = []; params(); plines = [x.strip() for x in A.lines if 's_nop' not in x]
    A.__dict__.update(realA)
    groups = []; cur = []
    for x in plines:
        if cur and not x.startswith(('s_cselect', 's_subb', 's_addc')) and not (x.startswith('s_mov') and cur[-1].startswith('s_cmp')):
            groups.append(cur); cur = []
        cur.append(x)
    groups.append(cur)
    ps = Stream(groups, len(groups) / max(nxa, 1) + 1e-6)
    sched(A, xraw[:nxa], [ps], flush=[ps])
    stamp(13, 8)
    A(f'v_mov_b32 {v(vRDY)}, 1')
    A(f'v_lshlrev_b32 {v(vZO)}, 8, {v(vZO)}') if False else A(f'v_lshl_or_b32 {v(vZO)}, v0, 8, {v(vZO)}')
    A.wait_vm_tok('job')
    A('s_barrier')
    A(f'buffer_store_dword {v(vRDY)}, {v(vZO)}, {DBG}, 0 offen sc1')
    JBF = 136
    for pr in range(4):
        b = JBF + 8*pr
        for u in range(2):
            for p in range(2):
                A(f'ds_read_b64_tr_b16 {v(b+4*u+2*p,2)}, {v(vJR)} offset:{u*2048+p*1024}')
        if pr < 3: A(f'v_add_u32 {v(vJR)}, {s(jRS)}, {v(vJR)}')
    A(f's_add_u32 {s(t2)}, {s(jDST)}, 4096')
    for pr in range(4):
        b = JBF + 8*pr
        for u in range(2):
            for d in range(4*u, 4*u+4):
                A(f'v_and_b32 {v(b+d)}, {v(b+d)}, {v(vMB if d >= 6 else vMA)}')
            f_ = 2*pr + u
            so = s(jDST) if f_ < 4 else s(t2)
            A(f'buffer_store_dwordx4 {v(b+4*u,4)}, {v(vDJ if f_ < 7 else vD8)}, {WS}, {so} offen offset:{(f_%4)*KB} sc1')
    for d in range(28): A(f'v_dot2c_f32_bf16 {v(vCS)}, {s(sONES)}, {v(JBF+d)}')
    C = 176
    A(f'v_mov_b32 {v(C)}, {v(vCS)}')
    A(f'v_permlane32_swap_b32 {v(C)}, {v(vCS)}')
    A(f'v_add_f32 {v(C)}, {v(C)}, {v(vCS)}')
    A(f'v_cvt_pk_bf16_f32 {v(C+1)}, {v(C)}, {v(C)}')
    A(f'v_and_b32 {v(C+2)}, 0xffff0000, {v(C+1)}')
    A(f'v_sub_f32 {v(C+2)}, {v(C)}, {v(C+2)}')
    A(f'v_cvt_pk_bf16_f32 {v(C+4)}, {v(C)}, {v(C+2)}')
    A(f'v_and_b32 {v(C+5)}, 0xffff, {v(C+1)}')
    A(f'buffer_store_dwordx2 {v(C+4,2)}, {v(vDC)}, {WS}, {s(jCS)} offen sc1')
    stamp(14, 8)
    setup = []
    S_ = setup.append
    S_(f'v_add_u32 {v(vL1)}, 0x10000, {v(vL0)}')
    S_(f'v_add_u32 {v(vL2)}, 0x20000, {v(vL0)}')
    S_(f's_mul_i32 {s(t0)}, {s(sIDX)}, 37')
    S_(f's_lshr_b32 {s(t0)}, {s(t0)}, 8')
    S_(f's_mul_i32 {s(t2)}, {s(t0)}, 7')
    S_(f's_sub_u32 {s(cto)}, {s(sIDX)}, {s(t2)}')
    S_(f's_lshl_b32 {s(cto)}, {s(cto)}, 1')
    S_(f's_and_b32 {s(t2)}, {s(sW)}, 1')
    S_(f's_add_u32 {s(cto)}, {s(cto)}, {s(t2)}')
    S_(f's_min_u32 {s(t0)}, {s(t0)}, 3')
    S_(f's_lshl_b32 {s(t0)}, {s(t0)}, 1')
    S_(f's_add_u32 {s(t0)}, {s(t0)}, {s(t1)}')
    S_(f's_lshr_b32 {s(t2)}, {s(sW)}, 1')
    S_(f's_add_u32 {s(tto)}, {s(t0)}, {s(t2)}')
    S_(f's_lshl_b32 {s(sSH8)}, {s(sW)}, 3')
    S_(f's_min_u32 {s(sSH8)}, {s(sSH8)}, 21')
    S_(f's_lshl_b32 {s(sSH8)}, {s(sSH8)}, 10')
    S_(f's_mul_i32 {s(sSH15)}, {s(sW)}, 15')
    S_(f's_min_u32 {s(sSH15)}, {s(sSH15)}, 43')
    S_(f's_lshl_b32 {s(sSH15)}, {s(sSH15)}, 10')
    S_(f's_mov_b32 {s(sLN2)}, {f32(LN2)}')
    S_('s_mov_b64 vcc, 0')
    S_('s_mov_b32 s48, 0x0fffffff'); S_('s_mov_b32 s49, 0x0fffffff')
    S_('s_mov_b32 s50, 0x10000000'); S_('s_mov_b32 s51, 0x10000000')
    S_('s_mov_b32 s52, -1'); S_('s_mov_b32 s53, 0')
    S_(f's_mov_b32 s14, {2048*448*2}'); S_('s_mov_b32 s15, 0x00020000')
    S_(f'v_mov_b32 {v(vc0)}, {f32(1e-6)}')
    S_(f'v_mov_b32 {v(vc1)}, {ONES}')
    S_(f'v_bfe_u32 {v(vPH)}, {v(vt1)}, 2, 1')
    S_(f'v_mul_u32_u24 {v(vPH)}, {CB_STR}, {v(vPH)}')
    S_(f'v_and_b32 {v(vt0)}, 3, {v(vt1)}')
    S_(f'v_lshl_add_u32 {v(vPH)}, {v(vt0)}, 2, {v(vPH)}')
    S_(f'v_lshlrev_b32 {v(vRR)}, 4, {v(vG)}')
    S_(f's_lshl_b32 {s(t2)}, {s(sW)}, 8')
    S_(f's_add_u32 {s(t2)}, {s(t2)}, {RARR}')
    S_(f'v_add_u32 {v(vRR)}, {s(t2)}, {v(vRR)}')
    S_(f'v_add_u32 {v(vRW)}, {s(t2)}, {v(vL4)}')
    S_(f'v_lshlrev_b32 {v(vCI)}, 2, {v(vI)}')
    def lin(dst, base, *terms):
        first = True
        for reg, mul in terms:
            tt = dst if first else t3
            S_(f's_mul_i32 {s(tt)}, {s(reg)}, {mul}')
            if not first: S_(f's_add_u32 {s(dst)}, {s(dst)}, {s(t3)}')
            first = False
        if base: S_(f's_add_u32 {s(dst)}, {s(dst)}, {base}')
    lin(sOUT, 0, (tto, 28*KB), (cto, 64))
    lin(aXO, XF, (tto, 28*KB), (cto, 2*KB))
    lin(aCBA, CB, (tta, CB_STR))
    lin(aWQ, PWQKV, (sC16, 3*T))
    lin(aW13, PW13, (sC16, 7*T))
    lin(aPQW, PQ, (tta, 32*KB), (sC16, 2*KB))
    lin(aKVW, KV, (sC16, 4*KB), (sW, KB))
    lin(aFLR, CB + FL_OFF, (sGRP, 8*CB_STR))
    lin(aFLW, CB + FL_OFF, (sGRP, 8*CB_STR), (sIDX, 4))
    lin(aWO, PWO, (cto, 32*KB))
    lin(aKVR, KV, (sW, 16*KB))
    lin(aPQR, PQ, (t0, 32*KB), (sW, 8*KB))
    S_(f's_lshr_b32 {s(t1)}, {s(cto)}, 2')
    S_(f's_and_b32 {s(t2)}, {s(cto)}, 3')
    lin(aSTO, CB + ST_OFF, (tto, CB_STR), (t1, KB), (t2, 4))
    lin(aHW, HB, (tta, 112*KB), (sC16, 7*KB))
    lin(aFHW, CB + FH_OFF, (tta, CB_STR), (sC16, 4))
    lin(aFHR, CB + FH_OFF, (t0, CB_STR), (sW, 16))
    lin(aHR0, HB, (tto, 112*KB), (sW, 28*KB))
    S_(f's_xor_b32 {s(t1)}, {s(tto)}, 1')
    lin(aHR1, HB, (t1, 112*KB), (sW, 28*KB))
    lin(aW2a, PW2, (cto, 112*KB), (sW, 28*KB))
    S_(f's_xor_b32 {s(t1)}, {s(cto)}, 1')
    lin(aW2b, PW2, (t1, 112*KB), (sW, 28*KB))
    S_(f's_getreg_b32 {s(sXCC)}, hwreg(HW_REG_XCC_ID, 0, 4)')
    lin(7, CB, (tta, CB_STR), (sC16, KB))
    lin(3, KV - 14*KB, (tta, 2*KB), (sC16, KB))
    S_(f's_cmp_ge_u32 {s(sC16)}, 14')
    S_('s_cselect_b32 s7, s3, s7')
    S_(f'buffer_store_dwordx4 {v(ZR_,4)}, {v(vL0)}, {WS}, s7 offen sc1')
    S_(f'v_mul_u32_u24 {v(vXO)}, 896, {v(vI)}')
    S_(f'v_lshl_add_u32 {v(vXO)}, {v(vG)}, 4, {v(vXO)}')
    S_(f's_or_b32 {s(sXCC)}, {s(sXCC)}, 0x80')
    run(setup)
    NXE = nxe
    A(f'v_mov_b32 {v(vZO)}, 0')
    rdl = f'buffer_load_dword {v(vRDY)}, {v(vZO)}, {DBG}, 0 offen sc1'
    A(rdl)
    run(xraw[nxa:nxa+NXE])
    A(f'v_mov_b32 {v(vMA)}, {s(sXCC)}')
    A('s_lshl_b32 s3, s2, 7')
    A(f's_add_u32 s3, s3, {PF}')
    A(f's_lshl_b32 {s(t3)}, {s(sIDX)}, 7')
    A(f's_lshl_b32 {s(t2)}, {s(sGRP)}, 2')
    A(f's_add_u32 {s(t3)}, {s(t3)}, {s(t2)}')
    A(f's_add_u32 {s(t3)}, {s(t3)}, {PFD}')
    A._wait_vm(NXE)
    A('s_barrier')
    stamp(15, 8)
    snk = A.snapshot()
    A(f's_cmp_lg_u32 {s(sW)}, 0')
    A('s_cbranch_scc1 J_nopk')
    A(f'v_cmp_ne_u32 {mP}, 0, {v(vRDY)}')
    A(f's_cmp_eq_u64 {mP}, exec')
    A('s_cbranch_scc1 J_rdy')
    poll_loop([rdl], [f'v_cmp_ne_u32 {mP}, 0, {v(vRDY)}'], [f's_cmp_eq_u64 {mP}, exec'])
    A.label('J_rdy')
    A('s_mov_b64 exec, 1')
    A('s_cmp_ge_u32 s2, 48')
    A('s_cbranch_scc1 J_nopk2')
    A(f'buffer_store_dword {v(vMA)}, {v(vL4)}, {WS}, s3 offen sc1')
    A.label('J_nopk2')
    A(f'buffer_store_dword {v(vMA)}, {v(vL4)}, {WS}, {s(t3)} offen sc1')
    A('s_mov_b64 exec, -1')
    A.label('J_nopk'); A.restore(snk)
    stamp(20, 8)
    run(xraw[nxa+NXE:])
    A(f's_add_u32 {s(aXA)}, {s(aXA)}, {XF}')
    A(f'v_lshrrev_b32 {v(vt0)}, 3, {v(vI)}')
    A(f'v_lshlrev_b32 {v(vJO)}, 10, {v(vt0)}')
    A(f'v_and_b32 {v(vt0)}, 7, {v(vI)}')
    A(f'v_lshl_add_u32 {v(vJO)}, {v(vt0)}, 7, {v(vJO)}')
    A(f'v_add_u32 {v(vJO)}, {s(jNG)}, {v(vJO)}')
    A(f'v_bfe_u32 {v(vt0)}, {v(vI)}, 1, 3')
    A(f'v_xor_b32 {v(vt0)}, {v(vt0)}, {v(vG)}')
    XR = 188
    for k_ in range(4):
        A(f'v_xor_b32 {v(vt1)}, {2*k_}, {v(vt0)}')
        A(f'v_lshl_add_u32 {v(XR+k_)}, {v(vt1)}, 4, {v(vJO)}')
    A(f'v_mov_b32 {v(vm_)}, 0'); A(f'v_mov_b32 {v(vve_)}, 0')
    def xproc(t):
        b = X + 4*t
        return [f'v_dot2c_f32_bf16 {v(vm_)}, {s(sONES)}, {v(b+d)}' for d in range(4)] + \
               [f'v_dot2c_f32_bf16 {v(vve_)}, {v(b+d)}, {v(b+d)}' for d in range(4)] + \
               [f'v_permlane32_swap_b32 {v(b)}, {v(b+2)}', f'v_permlane32_swap_b32 {v(b+1)}, {v(b+3)}']
    NPRE = 12
    for b_ in range(7):
        A.wait_vm_tok(('x', b_))
        for k_ in range(4): A(f'ds_read_b128 {v(X+4*(4*b_+k_),4)}, {v(XR+k_)} offset:{b_*4*KB}')
        if 1 <= b_ <= NPRE//4:
            for k_ in range(4): run(xproc(4*(b_-1)+k_))
    stamp(16, 8)
    A(f's_lshr_b32 {s(t2)}, {s(sC16)}, 2')
    A(f's_mul_i32 {s(t2)}, {s(t2)}, {12*128}')
    A(f's_add_u32 {s(t2)}, {s(t2)}, {PF}')
    A(f'v_min_u32 {v(vt1)}, 44, {v(vL4)}')
    A(f'v_lshlrev_b32 {v(vt1)}, 5, {v(vt1)}')
    A.wait_lg_all()
    A(f's_cmp_lg_u32 {s(sW)}, 0')
    sn = A.snapshot()
    A('s_cbranch_scc1 J_nopoll')
    poll_loop([f'buffer_load_dword {v(vP)}, {v(vt1)}, {WS}, {s(t2)} offen sc1'], [f'v_cmp_ne_u32 {mP}, 0, {v(vP)}'], [f's_cmp_eq_u64 {mP}, exec'])
    A.label('J_nopoll'); A.restore(sn)
    A('s_barrier')
    stamp(17, 8)
    A(f's_lshl_b32 {s(t0)}, {s(sW)}, 10')
    A(f's_add_u32 {s(t1)}, {s(t0)}, {s(aWQ)}')
    wl = []
    for i_ in range(8):
        for m_, sl in ((0, SA), (1, SB)):
            o_ = min(4*i_, 25) * KB
            wl.append([f's_add_u32 {s(t2)}, {s(t1)}, {m_*T + o_}', f's_add_u32 m0, {s(t0)}, {sl + o_}',
                       (lambda i_=i_: A(f'buffer_load_dwordx4 {v(vL0)}, {WS}, {s(t2)} offen sc1 lds', tok='wkv0' if i_ < 4 else 'wkv1'))])
    wl += dma(SC_, aWQ, 2*T, 8, sSH8, t2, 'wq')
    wl += [f'buffer_load_dwordx4 {v(vRES+4*u,4)}, {v(vXO)}, {XS}, {s(sOUT)} offen offset:{32*u}' for u in range(2)]
    xs_ = Stream([y for t in range(NPRE, 28) for y in xproc(t)], 10)
    sched(A, wl[:16], [xs_], flush=[xs_])
    A(f'v_permlane32_swap_b32 {v(vm_)}, {v(vve_)}')
    A(f'v_add_f32 {v(vm_)}, {v(vm_)}, {v(vve_)}')
    run(wl[24:])
    if ts:
        for i in range(60, 84): A(f's_mov_b32 {s(i)}, 0')

    def nfrag(dsts, sbase, st, sc='sc1', base=0, lat=90, stream='vm', rel0=0, drel=0, prio=0, xr=()):
        out = []
        for n, d in enumerate(dsts):
            off = base + (n//4)*4*KB
            it = [f's_add_u32 {s(st)}, {s(sbase)}, {off}'] if (off and n % 4 == 0) else []
            so = s(st) if off else s(sbase)
            it.append(f'buffer_load_dwordx4 {d}, {v(vL0)}, {WS}, {so} offen offset:{(n%4)*KB} {sc}')
            out.append(N(it, lat=lat, stream=stream, rel=rel0 + n*drel, prio=prio, xr=xr))
        return out
    def ndma(ldsbase, sbase, goff, n, ssh, st, tok, lat=170, rel0=0, drel=0, xr=(), prio=0):
        out = []
        for i in range(n):
            it = []
            if i % 4 == 0:
                it.append(f's_add_u32 {s(st)}, {s(sbase)}, {s(ssh)}')
                if goff + i*KB: it.append(f's_add_u32 {s(st)}, {s(st)}, {goff + i*KB}')
                it.append(f's_add_u32 m0, {s(ssh)}, {ldsbase + i*KB}')
                it.append('s_nop 0')
            it.append(f'buffer_load_dwordx4 {v(vL0)}, {WS}, {s(st)} offen offset:{(i%4)*KB} sc1 lds')
            nd = N(it, tok=tok, stream='dma', rel=rel0 + i*drel, xr=xr, xw=[('dma', tok)], prio=prio)
            nd.dmalat = lat
            out.append(nd)
        return out
    def nbar(xr=(), xw=(), vm=(), lg=(), rel=0, prio=0):
        def pre():
            for tk in vm: A.wait_vm_tok(tk)
            for tk in lg: A.wait_lg_tok(tk)
        return N(['s_barrier'], xr=list(xr) + [('dma', tk) for tk in vm], xw=xw, pre=pre, stream='bar', rel=rel, prio=prio)
    V = lambda lst, **kw: [N(x[0] if isinstance(x, tuple) else x, **kw) for x in lst]
    w2n = lambda a_, b_, **kw: [N([f's_add_u32 s3, {s(aW2a if i < 28 else aW2b)}, {((i%28)//4)*4*KB}',
                                   f'buffer_load_dwordx4 {a(4*i,4)}, {v(vL0)}, {WS}, s3 offen offset:{(i%4)*KB} sc1'],
                                  stream='w2', rel=kw.get('rel0', 0) + (i-a_)*kw.get('drel', 0), xr=kw.get('xr', ())) for i in range(a_, b_)]
    def phi4(acc, j, scale):
        e = T2 + (j % 4) * 2; m = e + 1
        return [f'v_mul_f32 {v(acc+j)}, {v(acc+j)}, {v(scale)}',
                f'v_exp_f32 {v(e)}, {v(acc+j)} clamp',
                f'v_max_f32 {v(m)}, 0, {v(acc+j)}',
                f'v_fma_f32 {v(m)}, {v(m)}, {s(sLN2)}, {v(vc0)}',
                f'v_add_f32 {v(acc+j)}, {v(m)}, {v(e)}']
    W2A, W2B, W2C = 34, 46, 56

    def layer(l):
        L = lambda n: f'{n}{l}'
        if l: poll_stats(2)
        stamp(1)
        A(f's_lshl_b32 {s(sT)}, {s(sW)}, 12')
        A(f'v_add_u32 {v(vP+1)}, {s(sT)}, {v(vL0)}')
        A(f's_lshl_b32 {s(sT)}, {s(sW)}, 10')
        A(f'v_add_u32 {v(vP+2)}, {s(sT)}, {v(vL4)}')
        A(f's_add_u32 {s(sT+3)}, {s(aKVW)}, {l*KV_STR}')
        kb = lambda t: WB + 4*(t % 3); vb_ = lambda t: WB + 12 + 4*(t % 3)
        qb = lambda t: [kb(2), vb_(2), kb(0), vb_(0), kb(1), vb_(1)][t % 6]
        sf = (stat_sum(vm_) if l else []) + stat_tail(M, vm_, vve_, vr_)
        sf.append(f'v_mul_f32 {v(vrl_)}, {f32(LOG2E)}, {v(vr_)}')
        sf.append(f'v_cndmask_b32 {v(vt0)}, {v(vrl_)}, {v(vr_)}, {mLO}')
        stat_nodes = V(sf) + [N(f'ds_write_b32 {v(vRW)}, {v(vt0)}', xw=['rarr'], lat=2)]
        stat_nodes += [N(f'ds_read_b128 {v(RL+4*c,4)}, {v(vRR)} offset:{128 + 32*c}', xr=['rarr']) for c in range(4)]
        stat_nodes += [N(f'ds_read_b128 {v(RR+4*c,4)}, {v(vRR)} offset:{32*c}', xr=['rarr']) for c in range(4)]
        def kv_nodes(a_, b_):
            o = []
            for t in range(a_, b_):
                xa = v(X+4*t,4) if t < 28 else v(M,4)
                vis = ['kvlate'] if (l == 0 and t >= 16) else []
                o += [N(dsr(kb(t), SA + t*KB), xr=vis), N(dsr(vb_(t), SB + t*KB), xr=vis),
                      N(f'{MF} {v(AK,16)}, {xa}, {v(kb(t),4)}, {v(AK,16) if t else 0}', xr=['usek']),
                      N(f'{MF} {v(AV,16)}, {xa}, {v(vb_(t),4)}, {v(AV,16) if t else 0}')]
            return o
        nodes = []
        if l:
            nodes += nfrag([v(X+4*t,4) for t in range(28)], aXA, sT, lat=xlat)
            nodes += [nbar(xw=['freeD'])]
            nodes += stat_nodes + kv_nodes(0, 29)
            nodes += ndma(SD, aW13, 0, 15, sSH15, sT+1, 'w13a', xr=['freeD'], rel0=330, drel=20)
        else:
            A.wait_vm_tok('wkv0')
            A('s_barrier')
            A(f'v_lshlrev_b32 {v(vt1)}, 5, {v(vCI)}')
            A(f'v_lshrrev_b32 {v(vP)}, 3, {v(vL4)}')
            A(f'v_and_or_b32 {v(vt1)}, {v(vP)}, 16, {v(vt1)}')
            A(f's_mov_b32 {s(sT+2)}, {PFD}')
            PDV = AQ
            pdl = f'buffer_load_dwordx4 {v(PDV,4)}, {v(vt1)}, {WS}, {s(sT+2)} offen sc1'
            pdr = [f'v_min3_u32 {v(PDV+4)}, {v(PDV)}, {v(PDV+1)}, {v(PDV+2)}', f'v_min_u32 {v(PDV+4)}, {v(PDV+4)}, {v(PDV+3)}', f'v_cmp_ne_u32 {mP}, 0, {v(PDV+4)}']
            n0 = [N(pdl, stream='vm')] + ndma(SC_, aWQ, 2*T, 8, sSH8, sT+1, 'wq', drel=16) + stat_nodes + kv_nodes(0, PDS)
            schedule(A, n0, verbose=vb, name='qkv0a')
            run(pdr)
            A(f's_cmp_eq_u64 {mP}, exec')
            sn = A.snapshot()
            A('s_cbranch_scc1 M_pdok')
            poll_loop([pdl], pdr, [f's_cmp_eq_u64 {mP}, exec'])
            A.label('M_pdok'); A.restore(sn)
            if fast:
                A(f's_and_b32 {s(sT)}, {s(sGRP)}, 1'); A(f's_cmp_lg_u32 {s(sT)}, 0'); A(f's_cselect_b64 {mP}, -1, 0')
                A(f'v_cndmask_b32 {v(PDV)}, {v(PDV)}, {v(PDV+1)}, {mP}')
                A(f'v_cndmask_b32 {v(PDV+2)}, {v(PDV+2)}, {v(PDV+3)}, {mP}')
                A(f's_and_b32 {s(sT)}, {s(sGRP)}, 2'); A(f's_cmp_lg_u32 {s(sT)}, 0'); A(f's_cselect_b64 {mP}, -1, 0')
                A(f'v_cndmask_b32 {v(PDV)}, {v(PDV)}, {v(PDV+2)}, {mP}')
                A(f'v_cmp_eq_u32 {mP}, {s(sXCC)}, {v(PDV)}')
                A(f's_cmp_ge_u32 {s(sGRP)}, 4')
                A(f's_cselect_b32 {s(sT)}, s55, s54')
                A(f's_cmp_eq_u32 {s(sT)}, -1')
                A('s_cselect_b64 vcc, -1, 0')
            stamp(18, 8)
            nodes += [nbar(xw=['kvlate'], vm=['wkv1'])]
            nodes += kv_nodes(PDS, 29)
            nodes += [nbar(xw=['visq'], vm=['wq'], rel=120)]
            nodes += V([f'v_permlane32_swap_b32 {v(vRES+4*u+k_)}, {v(vRES+4*u+k_+2)}' for u in range(2) for k_ in range(2)])
            nodes += ndma(SD, aW13, 0, 15, sSH15, sT+1, 'w13a', drel=34)
            nodes += w2n(0, W2A, drel=17)
        for t in range(29):
            xa = v(X+4*t,4) if t < 28 else v(M,4)
            nodes += [N(dsr(qb(t), SC_ + t*KB), xr=['visq']),
                      N(f'{MF} {v(AQ,16)}, {v(qb(t),4)}, {xa}, {v(AQ,16) if t else 0}')]
        for j in range(16): nodes += V(phi4(AK, j, RL+j))
        for d in range(8):
            nodes += V([f'v_cvt_pk_bf16_f32 {v(AK+d)}, {v(AK+2*d)}, {v(AK+2*d+1)}', f'v_cndmask_b32 {v(AK+d)}, 0, {v(AK+d)}, {mK}'])
        nodes += V([f'v_mul_f32 {v(AV+j)}, {v(AV+j)}, {v(RR+j)}' for j in range(16)])
        for d in range(8):
            nodes += V([f'v_cvt_pk_bf16_f32 {v(AV+d)}, {v(AV+2*d)}, {v(AV+2*d+1)}', f'v_cndmask_b32 {v(AV+d)}, {v(AV+d)}, {v(vc1)}, {mZ}'])
        KVA = RL
        nodes += [nbar(xw=['usek', 'kvbuf'])]
        nodes += [N(f'{MF} {v(KVA,16)}, {v(AK,4)}, {v(AV,4)}, 0'), N(f'{MF} {v(KVA,16)}, {v(AK+4,4)}, {v(AV+4,4)}, {v(KVA,16)}')]
        nodes += [N(f'ds_write_b128 {v(vP+1)}, {v(KVA+4*jq,4)} offset:{jq*KB}', tok='kvw', xr=['kvbuf'], xw=['kvw'], lat=20) for jq in range(4)]
        nodes += [nbar(xr=['kvw'], xw=['kvvis'], lg=['kvw'])]
        for n in range(4):
            b = RR + 4*n
            nodes += [N(f'ds_read_b32 {v(b+w2)}, {v(vP+2)} offset:{w2*4096 + n*256}', xr=['kvvis']) for w2 in range(4)]
            nodes += V([f'v_add_f32 {v(b)}, {v(b)}, {v(b+1)}', f'v_add_f32 {v(b+2)}, {v(b+2)}, {v(b+3)}', f'v_add_f32 {v(b)}, {v(b)}, {v(b+2)}'])
            nodes += [N(f'buffer_atomic_add_f32 {v(b)}, {v(vL4)}, {WS}, {s(sT+3)} offen offset:{n*256}', prio=300)]
        for j in range(16): nodes += V(phi4(AQ, j, vrl_))
        nodes += V([f'v_cvt_pk_bf16_f32 {v(AQ+d)}, {v(AQ+2*d)}, {v(AQ+2*d+1)}' for d in range(8)])
        nodes += [N(f'buffer_store_dwordx4 {v(AQ+4*u,4)}, {v(vL0)}, {WS}, {s(aPQW)} offen offset:{u*KB} sc1', prio=180) for u in range(2)]
        schedule(A, nodes, verbose=vb, name='qkv', lazy=lazy)
        stamp(3)
        A(f'v_mov_b32 {v(vt0)}, 1')
        A.wait_vm_all()
        A.wait_lg_all()
        A('s_barrier')
        A(f's_cmp_lg_u32 {s(sW)}, 0')
        sn = A.snapshot()
        A(f's_cbranch_scc1 {L("M_nofl")}')
        publish(flag_store(s(aFLW), vt0, off=128*l))
        A.label(L('M_nofl')); A.restore(sn)
        stamp(4)
        KVR = 24; PQR = 88; NUM = 152; ACC = 184; WO1 = 200
        fl_load = [f'buffer_load_dword {v(vP)}, {v(vCI)}, {WS}, {s(aFLR)} offen offset:{128*l} sc1']
        fl_red = [f'v_cmp_ne_u32 {mP}, 0, {v(vP)}']
        FG = CB + CB_STR + FL_OFF + 128*l
        A(f's_cmp_lt_u32 {s(sIDX)}, 28')
        sn = A.snapshot()
        A(f's_cbranch_scc1 {L("M_wo")}')
        A(f's_lshl_b32 {s(sT)}, {s(sIDX)}, 2')
        A(f's_add_u32 {s(sT)}, {s(sT)}, {s(sW)}')
        A(f's_cmp_lg_u32 {s(sT)}, {28*4}')
        A(f's_cbranch_scc1 {L("M_noagg")}')
        poll_loop(fl_load, fl_red, [f's_cmp_eq_u64 {mP}, exec'])
        A(f's_lshl_b32 {s(sT)}, {s(sGRP)}, 2')
        A(f's_add_u32 {s(sT)}, {s(sT)}, {FG}')
        flag_store(s(sT), vt0)('sc1')
        A.label(L('M_noagg'))
        run(dma(SC_, aW13, 2*T, 8, sSH8, sT+1, 't2'))
        A.wait_vm_all(force=True)
        A('s_barrier'); A(f's_branch {L("M_up")}')
        A.label(L('M_wo')); A.restore(sn); A.hazard_fence()
        wreg = {}
        order = [(4*wq + r, u) for r in range(4) for wq in range(4) for u in range(2)]
        pool = [v(WO1+4*i,4) for i in range(14)] + [v(KVR+8,4), v(KVR+12,4)] + \
               [v(KVR+16*b+8+4*i,4) for b in (1,2,3) for i in range(2)] + [v(KVR,4), v(KVR+4,4)] + [a(224+4*i,4) for i in range(8)]
        for k_, hu in enumerate(order): wreg[hu] = pool[k_]
        def wo_load(hu, st=sT+3):
            g = hu[0]*2 + hu[1]
            return [f's_add_u32 {s(st)}, {s(aWO)}, {(g//4)*4*KB}',
                    f'buffer_load_dwordx4 {wreg[hu]}, {v(vL0)}, {WS}, {s(st)} offen offset:{(g%4)*KB} sc1']
        for hu in order[:14]: run(wo_load(hu))
        A(f's_cmp_ge_u32 {s(sIDX)}, 14')
        A(f's_cselect_b32 {s(sT+2)}, 16, 0')
        poll_loop(fl_load, fl_red, [f's_lshr_b32 {s(sT)}, s54, {s(sT+2)}', f's_and_b32 {s(sT)}, {s(sT)}, 0xffff', f's_cmp_eq_u32 {s(sT)}, 0xffff'])
        acquire()
        pqr = lambda hh, tt, u: PQR + ((hh*2 + tt)*2 + u)*4
        for tt in range(2):
            for hh in range(4):
                for u in range(2):
                    g = tt*32 + hh*2 + u
                    if g % 4 == 0: A(f's_add_u32 {s(sT+3)}, {s(aPQR)}, {g*KB}')
                    A(f'buffer_load_dwordx4 {v(pqr(hh,tt,u),4)}, {v(vL0)}, {WS}, {s(sT+3)} offen offset:{(g%4)*KB} sc1')
        for d in range(8):
            A(f'v_lshlrev_b32 {v(ACC+2*d)}, 16, {v(vRES+d)}')
            A(f'v_and_b32 {v(ACC+2*d+1)}, 0xffff0000, {v(vRES+d)}')
        vOW, vOR = vRES, vRES+1
        A(f's_lshl_b32 {s(sT)}, {s(sW)}, 13')
        A(f'v_add_u32 {v(vOW)}, {s(sT)}, {v(vL0)}')
        A(f's_lshr_b32 {s(sT)}, {s(sW)}, 1')
        A(f's_lshl_b32 {s(sT)}, {s(sT)}, 15')
        A(f'v_add_u32 {v(vOR)}, {s(sT)}, {v(vL0)}')
        A(f'v_and_b32 {v(vt1)}, 0x1c, {v(vL4)}')
        A(f's_mov_b32 {s(sT+2)}, {FG}')
        poll_loop([f'buffer_load_dword {v(vP)}, {v(vt1)}, {WS}, {s(sT+2)} offen sc1'], fl_red, [f's_cmp_eq_u64 {mP}, exec'])
        stamp(5)
        nodes = nfrag([v(KVR+4*i,4) for i in range(16)], aKVR, sT+2, base=l*KV_STR, lat=kvlat)
        rnd = (lambda hh: hh) if rounds == 4 else (lambda hh: hh // 2)
        late = {0: [22, 23], 1: [], 2: [], 3: []}
        for hh in range(4):
            nodes += V([f'v_cvt_pk_bf16_f32 {v(KVR+16*hh+d)}, {v(KVR+16*hh+2*d)}, {v(KVR+16*hh+2*d+1)}' for d in range(8)])
            nodes += [N(wo_load(order[k_]), lat=100) for k_ in (14+2*hh, 15+2*hh)]
        if l == 0: nodes += [N(wo_load(hu), lat=100, rel=200) for hu in order[24:]]
        for hh in range(4):
            for tt in range(2):
                Nn = NUM + 16*tt; P = pqr(hh, tt, 0); d0 = vRES+2+2*tt; d1 = d0 + 1
                nodes += [N(f'{MF} {v(Nn,16)}, {v(KVR+16*hh,4)}, {v(pqr(hh,tt,0),4)}, 0'),
                          N(f'{MF} {v(Nn,16)}, {v(KVR+16*hh+4,4)}, {v(pqr(hh,tt,1),4)}, {v(Nn,16)}')]
                nodes += V([f'v_add_f32 {v(d0)}, {v(vc0)}, {v(Nn+12)}', f'v_rcp_f32 {v(d0)}, {v(d0)}', f'v_mov_b32 {v(d1)}, {v(d0)}',
                            f'v_permlane32_swap_b32 {v(d0)}, {v(d1)}'])
                for u in range(2):
                    nodes += V([f'v_mul_f32 {v(Nn+j)}, {v(Nn+j)}, {v(d1)}' for j in range(8*u, 8*u+8)])
                    nodes += V([f'v_cvt_pk_bf16_f32 {v(P+d)}, {v(Nn+2*d)}, {v(Nn+2*d+1)}' for d in range(4*u, 4*u+4)])
                    nodes += [N(f'ds_write_b128 {v(vOW)}, {v(P+4*u,4)} offset:{tt*32*KB + (hh*2+u)*KB}', tok=('ow', rnd(hh)), xw=[('ow', rnd(hh))], lat=20)]
            nodes += [N(wo_load(order[k_], 7), lat=100) for k_ in late[hh]]
            if hh == 3 or rnd(hh) != rnd(hh+1):
                nodes += [nbar(xr=[('ow', rnd(hh))], xw=[('ov', rnd(hh))], lg=[('ow', rnd(hh))])]
                for r in [q for q in range(4) if rnd(q) == rnd(hh)]:
                    for i, hu in enumerate(order[8*r:8*r+8]):
                        ob = pqr(r, 0, 0) + 4*(i % 4)
                        nodes += [N(f'ds_read_b128 {v(ob,4)}, {v(vOR)} offset:{(hu[0]*2+hu[1])*KB}', xr=[('ov', rnd(hh))]),
                                  N(f'{MF} {v(ACC,16)}, {wreg[hu]}, {v(ob,4)}, {v(ACC,16)}')]
        nodes += ndma(SC_, aW13, 2*T, 8, sSH8, sT+1, 't2', rel0=300, drel=16)
        if l == 0: nodes += w2n(W2A, W2B, rel0=340, drel=16)
        schedule(A, nodes, verbose=vb, name='wo')
        stamp(6)
        tile_store(ACC, 2*l+1)
        A.wait_lg_all(force=True)
        A('s_barrier')
        stamp(7)
        A.label(L('M_up')); A.merge(([], [], False))
        poll_stats(2*l+1)
        stamp(8)
        UA = [136, 152, 168, 184]; HO = 248
        UBS = [224, 228, 232, 236, 240, 244, 200, 204]
        A(f's_add_u32 {s(sT+3)}, {s(aHW)}, 4096')
        slot = [SD, SE, SC_, SA, SB, SD, SE]
        vnrl = TMP+11
        nodes = nfrag([v(X+4*t,4) for t in range(28)], aXA, sT, lat=xlat if l else 130)
        nodes += V(stat_sum(vm_) + stat_tail(M, vm_, vve_, vr_) + [f'v_mul_f32 {v(vnrl)}, {f32(-LOG2E)}, {v(vr_)}'])
        def silu(p):
            acc = UA[p % 4]; H = HO + 4*(p % 2)
            o = []
            for j in range(8):
                e = T2 + (j % 4)*2; q = e + 1
                o += V([f'v_mul_f32 {v(e)}, {v(acc+j)}, {v(vnrl)}', f'v_mul_f32 {v(q)}, {v(acc+j)}, {v(acc+8+j)}',
                        f'v_exp_f32 {v(e)}, {v(e)}', f'v_fma_f32 {v(e)}, {v(e)}, {v(vve_)}, {v(vve_)}',
                        f'v_rcp_f32 {v(e)}, {v(e)}', f'v_mul_f32 {v(acc+j)}, {v(q)}, {v(e)}'])
            o += V([f'v_cvt_pk_bf16_f32 {v(H+d)}, {v(acc+2*d)}, {v(acc+2*d+1)}' for d in range(4)])
            so = s(aHW) if p < 4 else s(sT+3)
            o.append(N(f'buffer_store_dwordx4 {v(H,4)}, {v(vL0)}, {WS}, {so} offen offset:{(p%4)*KB} {"sc1" if (l == 0 or h1) else ""}', prio=60))
            return o
        seq = []
        for t in range(29): seq += [(0, t), (1, t)]
        for p in range(2, 7): seq += [(p, t) for t in range(29)]
        T0 = 100
        at = lambda step: T0 + 8*step
        d13 = lambda p, a_, b_, xr=(): ndma(slot[p], aW13, p*T, 8, sSH8, sT+1, f't{p}', rel0=at(a_), drel=(b_-a_), xr=xr)
        dq = lambda sl, m, tok, a_, b_, xr: ndma(sl, aWQ, m*T, 8, sSH8, sT+1, tok, rel0=at(a_), drel=(b_-a_), xr=xr) if l == 0 else []
        extra = {58: d13(3, 30, 50) + d13(4, 52, 76),
                 87: [nbar(xw=[('use',0), ('use',1), 'f01', ('vis',3)], vm=['t3'], rel=at(72))] + d13(5, 78, 104, ['f01']),
                 116: [nbar(xw=[('use',2), 'f2', ('vis',4)], vm=['t4'], rel=at(102))] + d13(6, 106, 130, ['f01']) + dq(SC_, 2, 'wq', 118, 134, ['f2']),
                 145: [nbar(xw=[('use',3), 'f3', ('vis',5)], vm=['t5'], rel=at(131))] + dq(SA, 0, 'wkv', 136, 158, ['f3']),
                 174: [nbar(xw=[('use',4), 'f4', ('vis',6)], vm=['t6'], rel=at(160))] + dq(SB, 1, 'wkv', 162, 180, ['f4'])}
        for i, (p, t) in enumerate(seq):
            if i in extra: nodes += extra[i]
            ub = UBS[i % len(UBS)]
            xa = v(X+4*t,4) if t < 28 else v(M,4)
            acc = v(UA[p % 4],16)
            nodes += [N(dsr(ub, slot[p] + t*KB), xr=[('vis',p)]),
                      N(f'{MF} {acc}, {v(ub,4)}, {xa}, {acc if t else 0}', xr=[('use',p)], stream='mf')]
            if t == 28: nodes += silu(p)
            if (ts & 2) and i in (0, 57, 86, 115, 144, 173, 202):
                nodes.append(N(f's_memtime {s(tsreg({0:13, 57:14, 86:15, 115:16, 144:18, 173:19, 202:20}[i]),2)}', stream='mf'))
        if l == 0: nodes += w2n(W2B, W2C, rel0=at(60), drel=60)
        A.lg_keep = 4; MFLAT[0] = 34
        schedule(A, nodes, verbose=vb, name='up')
        A.lg_keep = None; MFLAT[0] = 17
        stamp(17, 2)
        A(f'v_mov_b32 {v(vt0)}, 1')
        A.wait_vm_all()
        publish(flag_store(s(aFHW), vt0, off=128*l))
        stamp(9)
        A.wait_lg_all(force=True)
        A('s_barrier')
        A(f's_cmp_ge_u32 {s(sIDX)}, 28')
        A(f's_cbranch_scc1 {L("M_next")}')
        DA = 24; HW = 88; NW = 24
        acc = lambda tt, c: DA + (tt*2 + c)*16
        for d in range(8):
            A(f'v_lshlrev_b32 {v(acc(0,0)+2*d)}, 16, {v(vRES+d)}')
            A(f'v_and_b32 {v(acc(0,0)+2*d+1)}, 0xffff0000, {v(vRES+d)}')
        RB = SD
        vRA = 200
        for x in (1, 2, 3):
            A(f's_xor_b32 {s(sT)}, {s(sW)}, {x}')
            A(f's_mul_i32 {s(sT)}, {s(sT)}, {12*KB}')
            A(f's_add_u32 {s(sT)}, {s(sT)}, {RB + (x-1)*4*KB}')
            A(f'v_add_u32 {v(vRA+x)}, {s(sT)}, {v(vL0)}')
        A(f's_mul_i32 {s(sT)}, {s(sW)}, {12*KB}')
        A(f's_add_u32 {s(sT)}, {s(sT)}, {RB}')
        A(f'v_add_u32 {v(vRA)}, {s(sT)}, {v(vL0)}')
        if l:
            A(f'v_mul_u32_u24 {v(vt0)}, 224, {v(vCI)}')
            A(f'v_lshrrev_b32 {v(vt1)}, 7, {v(vL4)}')
            A(f'v_lshl_add_u32 {v(vt0)}, {v(vt1)}, 4, {v(vt0)}')
        poll_loop([f'buffer_load_dword {v(vP)}, {v(vPH)}, {WS}, {s(aFHR)} offen offset:{128*l} sc1'],
                  [f'v_cmp_ne_u32 {mP}, 0, {v(vP)}'], [f's_cmp_eq_u64 {mP}, exec'])
        acquire()
        stamp(10)
        hreg = lambda i: HW + 4*(i % NW)
        hlat = 140 if (l == 0 or h1) else 90
        hl = nfrag([v(hreg(i),4) for i in range(28)], aHR1, sT, lat=hlat) + nfrag([v(hreg(28+i),4) for i in range(28)], aHR0, sT+1, lat=hlat)
        RD = 208; A0 = acc(0,0)
        nodes = []
        for i in range(56):
            tt = 1 if i < 28 else 0; t = i % 28
            nodes.append(hl[i])
            for c in (1, 0):
                first = (t == 0) and not (tt == 0 and c == 0)
                nodes.append(N(f'{MF} {v(acc(tt,c),16)}, {a((c*28+t)*4,4)}, {v(hreg(i),4)}, {0 if first else v(acc(tt,c),16)}', stream='mf'))
            if i == 27:
                nodes += [N(f'ds_write_b128 {v(vRA+2+c)}, {v(acc(1,c)+4*q,4)} offset:{q*KB}', tok='e', xw=['e'], lat=30) for c in range(2) for q in range(4)]
                nodes += [nbar(xr=['e'], xw=['ev'], lg=['e'])]
                nodes += [N(f'ds_read_b128 {v(RD+16*x+4*q,4)}, {v(vRA)} offset:{x*4*KB + q*KB}', xr=['ev']) for x in (1, 2) for q in range(4)]
                nodes += V([f'v_add_f32 {v(RD+16+j)}, {v(RD+16+j)}, {v(RD+32+j)}' for j in range(16)])
        nodes += [N(f'ds_write_b128 {v(vRA+1)}, {v(acc(0,1)+4*q,4)} offset:{q*KB}', tok='f', xw=['f'], lat=20) for q in range(4)]
        nodes += V([f'v_pk_add_f32 {v(A0+j,2)}, {v(A0+j,2)}, {v(RD+16+j,2)}' for j in range(0, 16, 2)])
        nodes += [nbar(xr=['f'], xw=['fv'], lg=['f'])]
        nodes += [N(f'ds_read_b128 {v(RD+4*q,4)}, {v(vRA)} offset:{q*KB}', xr=['fv']) for q in range(4)]
        nodes += V([f'v_pk_add_f32 {v(A0+j,2)}, {v(A0+j,2)}, {v(RD+j,2)}' for j in range(0, 16, 2)])
        schedule(A, nodes, verbose=vb, name='down')
        stamp(11)
        if l == 0:
            tile_store(A0, 2)
        else:
            for d in range(8): A(f'v_cvt_pk_bf16_f32 {v(vRES+d)}, {v(A0+2*d)}, {v(A0+2*d+1)}')
            for u in range(2):
                A(f'v_permlane32_swap_b32 {v(vRES+4*u)}, {v(vRES+4*u+2)}')
                A(f'v_permlane32_swap_b32 {v(vRES+4*u+1)}, {v(vRES+4*u+3)}')
                A(f'buffer_store_dwordx4 {v(vRES+4*u,4)}, {v(vt0)}, {OUT}, {s(sOUT)} offen offset:{32*u}')
        stamp(12)
        A.label(L('M_next')); A.merge(([], [], False))
        dump_ts(l)
    layer(0)
    layer(1)
    A.label('M_end')
    A('s_endpgm')
    for blk in slow_tail:
        for x in blk: A.raw(x)
    A.label('M_last')
    return A

HDR = open('cdna_kernels/' + NAME + '.s.ref').read().split('; Override launch')[0]
def assemble(A):
    n = NAME + '_kernel'
    out = HDR + '; Generated by a generator script of my own (phases: repack, qkv, wo, up, down x2 in one persistent launch).\n'
    out += '; @launch grid=(256,1,1) block=(256,1,1) lds=163840\n'
    out += '.amdgcn_target "amdgcn-amd-amdhsa--gfx950"\n.text\n'
    out += f'.globl {n}\n.p2align 8\n.type {n},@function\n{n}:\n' + A.text()
    out += f""".section .rodata,"a"
.p2align 6
.amdhsa_kernel {n}
  .amdhsa_next_free_vgpr 512
  .amdhsa_next_free_sgpr 102
  .amdhsa_accum_offset 256
  .amdhsa_group_segment_fixed_size 0
  .amdhsa_kernarg_size 80
  .amdhsa_user_sgpr_count 2
  .amdhsa_user_sgpr_kernarg_segment_ptr 1
  .amdhsa_system_sgpr_workgroup_id_x 1
  .amdhsa_float_denorm_mode_32 3
.end_amdhsa_kernel
"""
    return out

if __name__ == '__main__':
    opts = dict(a.split('=') for a in sys.argv[2:])
    M = gen_main(**{k: int(x) for k, x in opts.items()})
    print('stats', M.stats, file=sys.stderr)
    open(sys.argv[1], 'w').write(assemble(M))
```

```python
from asmlib import Ins, parse_reg, VALU_LIKE

SCC = ('c', 0)
MFLAT = [17]; VMC = [3]; DWC = [2]
class Node:
    def __init__(self, items, tok=None, stream=None, rel=0, lat=None, prio=0, blind=False, cb=None, pre=None, xr=(), xw=(), anc=None):
        self.anc = anc
        self.items = items if isinstance(items, list) else [items]
        self.ins = [Ins(x) for x in self.items]
        self.tok = tok; self.stream = stream; self.rel = rel; self.bias = prio; self.blind = blind; self.cb = cb
        last = self.ins[-1]
        self.cls = last.cls
        self.rd = set(); self.wr = set()
        for i in self.ins:
            self.rd |= (i.rd - self.wr); self.wr |= i.wr
            if i.cls == 'salu':
                if i.mn.startswith(('s_cselect', 's_addc', 's_subb', 's_cbranch')) and SCC not in self.wr: self.rd.add(SCC)
                if not i.mn.startswith(('s_mov', 's_cselect', 's_mul_i32')): self.wr.add(SCC)
        self.rd |= {('x', k) for k in xr}; self.wr |= {('x', k) for k in xw}
        self.pre = pre; self.needwait = False
        self.isw = last.mn.startswith('ds_write_b128')
        self.lat = lat
        self.succ = []; self.npred = 0; self.ready = 0

def latency(p, c, kind):
    if kind == 'raw':
        if p.lat is not None: return p.lat
        if p.cls == 'mfma':
            if c.cls == 'mfma' and p.ins[-1].wr == c.ins[-1].srcc: return 8
            return MFLAT[0]
        if p.cls == 'ds': return 30
        if p.cls == 'vmem': return 100
        if p.cls == 'trans': return 4
        if p.cls in VALU_LIKE:
            if c.cls in ('mfma', 'perm'): return 3
            return 2
        return 1
    if kind == 'ord': return 1
    if kind == 'waw':
        if p.cls == 'mfma' and c.cls == 'mfma' and p.ins[-1].wr == c.ins[-1].srcc: return 8
        return 17 if p.cls == 'mfma' else (latency(p, c, 'raw') if p.cls in ('ds', 'vmem') and not c.blind else 1)
    if p.cls == 'mfma' and (p.ins[-1].srcc & c.wr) and c.cls != 'mfma': return 9
    if p.cls == 'vmem' or p.cls == 'ds': return 3
    return 1

def schedule(A, nodes, vm_gap=16, dsw_gap=13, verbose=False, vm0=0, burst=4, name='', lazy=12, delta=30):
    n = len(nodes)
    lastw = {}; readers = {}; laststream = {}
    for i, x in enumerate(nodes):
        x.idx = i; deps = {}
        def dep(p, kind, r=None):
            if r is not None and r[0] in 'sc' and p.cls not in VALU_LIKE: l = 1
            elif r is not None and kind == 'raw' and r[0] == 'x' and hasattr(p, 'dmalat'): l = p.dmalat
            else: l = latency(p, x, kind)
            l += len(p.items) - 1
            deps[p.idx] = max(deps.get(p.idx, 0), l)
        for r in x.rd:
            if r in lastw:
                dep(lastw[r], 'raw', r)
                if lastw[r].cls in ('ds', 'vmem') and r[0] in 'va': x.needwait = True
        for r in x.wr:
            if r == SCC and SCC not in x.rd:
                for p in readers.get(r, []): dep(p, 'war', r)
                continue
            if r in lastw: dep(lastw[r], 'ord' if r[0] == 'x' else 'waw', r)
            for p in readers.get(r, []):
                if p is not x: dep(p, 'war', r)
        if x.stream is not None and x.stream in laststream:
            deps[laststream[x.stream].idx] = max(deps.get(laststream[x.stream].idx, 0), 1)
        assert SCC not in x.rd, 'keep SCC producer and consumer in one node: ' + str(x.items)
        for r in x.rd: readers.setdefault(r, []).append(x)
        for r in x.wr:
            lastw[r] = x; readers[r] = []
        if x.stream is not None: laststream[x.stream] = x
        x.npred = len(deps)
        for pi, l in deps.items(): nodes[pi].succ.append((x, l))
    for x in reversed(nodes):
        x.cp = max([l + c.cp for c, l in x.succ], default=len(x.items)) + x.bias
    avail = [x for x in nodes if x.npred == 0]
    t = 0; mf_free = 0; vm_clk = vm0; dsw_free = 0; prev = 'mfma'; done = 0
    waited = set(); nmf = 0
    order = []
    while done < n:
        assert t < 20000, ('stuck', name, nmf, [(x.items[-1], x.anc) for x in avail][:6])
        cand = [x for x in avail if x.ready <= t and x.rel <= t and (x.anc is None or x.anc <= nmf)]
        def ok(x):
            if x.cls == 'mfma': return mf_free <= t
            if x.cls == 'vmem' and (x.anc is not None or x.ins[-1].data): return True
            if x.cls == 'vmem': return vm_clk - (t + len(x.items) - 1) <= burst * vm_gap
            if x.isw: return dsw_free <= t
            if x.cls == 'dot' or x.ins[-1].mn.startswith('v_pk_'): return mf_free <= t
            return True
        cand = [x for x in cand if ok(x)]
        pick = None
        mf = [x for x in cand if x.cls == 'mfma']
        mem = [x for x in cand if x.cls in ('ds', 'vmem', 'salu', 'smem', 'nop')]
        val = [x for x in cand if x.cls in VALU_LIKE]
        key = lambda x: (-x.cp, x.idx)
        paced = [x for x in mem if x.anc is not None or x.stream == 'bar' or x.cls == 'nop' or (x.cls == 'vmem' and x.ins[-1].data)]
        topv = max([x.cp for x in val], default=-1)
        def mft(x):
            return max(x.ready, x.rel, mf_free + ((lazy - 8) if topv > x.cp + delta else 0))
        mf = [x for x in mf if mft(x) <= t]
        due = [x for x in mem if x.anc is not None and x.anc < nmf]
        if due and prev != 'mfma': mf = []; val = []; mem = due; prev = 'mem' if prev != 'valu' else prev
        nxt = [mft(x) for x in avail if x.cls == 'mfma']
        room = (min(nxt) - t) if nxt else 99
        if nxt and any(x.needwait and mft(x) == min(nxt) for x in avail if x.cls == 'mfma'): room -= 1
        if due and not mf: room = 9
        if room <= 0 and not mf:
            t += 1
            continue
        if mf: pick = min(mf, key=key)
        elif prev != 'valu' and paced and room >= 2 and not (prev == 'mfma' and any(x.cls == 'ds' and not x.isw for x in mem)):
            pick = min(paced, key=lambda x: (x.anc or 0, x.idx))
        elif prev != 'valu' and mem:
            fit = [x for x in mem if len(x.items) + (VMC[0] if x.cls == 'vmem' else 0) <= max(room, 1) or room > 8]
            if not fit and val: mem = []
            pick = min(fit or mem or val, key=key)
            if val and prev != 'mfma' and min(val, key=key).cp > pick.cp + 40 and room <= 8: pick = min(val, key=key)
        elif val:
            pick = min(val, key=key)
            urgent = [x for x in mem if x.cp > pick.cp + 6 and (room > 8 or room >= 3 + len(x.items))]
            if urgent and room > 8: pick = min(urgent, key=key)
            elif pick.cls == 'trans' and room == 1:
                alt = [x for x in val if x.cls != 'trans']
                if alt: pick = min(alt, key=key)
        elif mem:
            sal = [x for x in mem if x.cls == 'salu']
            if room > 8 or room >= 3 + 1: pick = min(mem, key=key)
            elif sal: pick = min(sal, key=key)
        if pick is None:
            t += 1
            continue
        x = pick
        cost = len(x.items)
        if x.cls in ('ds', 'vmem') and prev == 'valu': cost += 2
        if x.cls in VALU_LIKE and prev == 'mfma': t += 1
        if x.cls == 'trans': cost += 1
        if x.cls == 'vmem': cost += VMC[0]
        if x.isw: cost += DWC[0]
        x.t = t
        if x.cls == 'mfma': mf_free = t + 8; nmf += 1
        extra = 0
        if x.cls == 'vmem':
            vm_clk = max(vm_clk, t + cost - 1) + vm_gap; extra = vm_clk - vm_gap - (t + cost - 1)
        if x.isw: dsw_free = t + dsw_gap
        order.append(x); avail.remove(x); done += 1
        for c, l in x.succ:
            c.ready = max(c.ready, t + l + (extra if l > 20 else 0)); c.npred -= 1
            if c.npred == 0: avail.append(c)
        t += cost
        prev = 'mfma' if x.cls == 'mfma' else ('valu' if x.cls in VALU_LIKE else ('mem' if prev != 'valu' or x.cls != 'salu' else 'valu'))
    for x in order:
        if x.pre: x.pre()
        for k, it in enumerate(x.items):
            if k == len(x.items) - 1:
                if x.blind: A.blind(it)
                else: A(it, tok=x.tok)
            else: A(it)
        if x.cb: x.cb()
    if verbose: print('region', name, n, 'nodes', t, 'slots', sum(1 for x in nodes if x.cls == 'mfma'), 'mfma')
    return t
```

```python
import sys
sys.path.insert(0, 'gen')
from asmlib import *
from layout import *
from lsched import Node as N, schedule, MFLAT, VMC, DWC
import struct

NAME = 'interleave_layers__linear_attn_block__glu_gated_swiglu__prompt'
MF = 'v_mfma_f32_32x32x16_bf16'
ONES = 0x3f803f80
POLL_LIMIT = 300000
def f32(x): return '0x%08x' % struct.unpack('<I', struct.pack('<f', x))[0]
LOG2E = 1.4426950408889634
LN2 = 0.6931471805599453
WS = 's[8:11]'; OUT = 's[12:15]'
sW, sIDX, sC16, sSLOT = 16, 17, 18, 19
sSH8, sSH15, sONES, sLN2 = 20, 21, 22, 23
aXA, aCBA, aPQW, aKVW, aFLW, aFLR, aWO, aKVR, aPQR, aXO, aSTO, aHW, aFHW, aFHR, aHR0, aHR1, aWQ, aW13, aW2a, aW2b = range(24, 44)
sXCC, sGRP, sCNT, sOUT = 44, 45, 46, 47
mK = 's[48:49]'; mZ = 's[50:51]'; mLO = 's[52:53]'; mP = 's[54:55]'
sT = 56
JA = 's[60:63]'; JB = 's[64:67]'; XS = 's[68:71]'; DBG = 's[72:75]'
jP, jRS, jNG, jCS, jOA, jOB, jDST, jLB = range(76, 84)
NS = 21
def tsreg(i): return 100 if i == 0 else (60 + 2*(i-1) if i <= 12 else 84 + 2*(i-13))
SA = 0; SB = T; MISC = 2*T; SC_ = 2*T + 15360; SD = SC_ + T; SE = SD + T
RARR = MISC + 8192
vCI = 0
vL0, vL4, vPH, vRR, vRW = 1, 2, 3, 4, 5
vP = 6
vt0, vt1, vL1, vL2, vc0, vc1 = 10, 11, 12, 13, 14, 15
vRES = 16
W0 = 24

def gen_main(ts=0, fast=1, nxa=6, nxe=14, tlb=0, cwarm=1, h1=1, PDS=10, vb=0, rounds=4, xlat=70, kvlat=130, lazy=16, ipf=0, w2a=34, w2b=46, nnum=2, abl=0, vmc=2, dwc=2, p13=0, kvf=1, sp1=4, sp2=10, nx0=9, gb=1, US=179, nh0=15, fa=150, ca=187, ld=14, s5t=1, fl=20):
    VMC[0] = vmc; DWC[0] = dwc
    A = Asm()
    def stamp(i, lvl=1):
        if ts & lvl: A(f'{"s_memtime" if ts & 4 else "s_memrealtime"} {s(tsreg(i),2)}')
    def lds(off):
        return (v((vL0, vL1, vL2)[off >> 16]), off & 0xffff)
    def dsr(dst, off):
        b, o = lds(off)
        return f'ds_read_b128 {v(dst,4)}, {b} offset:{o}'
    def run(x): emit(A, x)
    def frag_loads(dsts, sbase, st, sc='', tok=None, base=0, selfc=False, blind=False):
        out = []
        for n, d in enumerate(dsts):
            it = []
            off = base + (n//4)*4*KB
            if off and (n % 4 == 0 or selfc):
                it.append(f's_add_u32 {s(st)}, {s(sbase)}, {off}')
            so = s(st) if off else s(sbase)
            txt = f'buffer_load_dwordx4 {d}, {v(vL0)}, {WS}, {so} offen offset:{(n%4)*KB} {sc}'
            it.append((lambda txt=txt: A.blind(txt)) if blind else (lambda txt=txt: A(txt, tok=tok)))
            out.append(it)
        return out
    def dma(ldsbase, sbase, goff, n, ssh, st, tok):
        out = []
        for i in range(n):
            it = []
            if i % 4 == 0:
                it.append(f's_add_u32 {s(st)}, {s(sbase)}, {s(ssh)}')
                if goff + i*KB: it.append(f's_add_u32 {s(st)}, {s(st)}, {goff + i*KB}')
                it.append(f's_add_u32 m0, {s(ssh)}, {ldsbase + i*KB}')
            it.append((lambda i=i: A(f'buffer_load_dwordx4 {v(vL0)}, {WS}, {s(st)} offen offset:{(i%4)*KB} sc1 lds', tok=tok)))
            out.append(it)
        return out
    def poll_loop(loads, reduce_, check):
        L = A.newlabel('Lpoll'); D = A.newlabel('Lpd')
        A(f's_mov_b32 {s(sCNT)}, 0')
        A.label(L)
        run(loads)
        A(f's_add_u32 {s(sCNT)}, {s(sCNT)}, 1')
        A.wait_vm_all()
        run(reduce_)
        A(f's_cmp_gt_u32 {s(sCNT)}, {POLL_LIMIT}')
        A(f's_cbranch_scc1 {D}')
        run(check)
        A(f's_cbranch_scc0 {L}')
        A.label(D)
    slow_tail = []
    def acquire():
        S = A.newlabel('Lacq'); R = A.newlabel('Lacqr')
        A(f's_cbranch_vccz {S}')
        A.label(R)
        slow_tail.append([S + ':', '  buffer_inv sc1', '  s_waitcnt vmcnt(0)', f'  s_branch {R}'])
    def publish(store_fn, release=True):
        S = A.newlabel('Lpub'); R = A.newlabel('Lpubr')
        A(f's_cbranch_vccz {S}')
        n0 = len(A.lines)
        store_fn('')
        body = [x.rstrip() + (' sc1' if 'buffer_store' in x else '') for x in A.lines[n0:]]
        A.label(R)
        slow_tail.append([S + ':'] + (['  buffer_wbl2 sc1', '  s_waitcnt vmcnt(0)'] if release else []) + body + [f'  s_branch {R}'])
    def flag_store(soff, val, off=0, srd=WS):
        def f(sc):
            A('s_mov_b64 exec, 1')
            A(f'buffer_store_dword {v(val)}, {v(vL4)}, {srd}, {soff} offen offset:{off} {sc}')
            A('s_mov_b64 exec, -1')
        return f
    STR = 208
    def poll_stats(n):
        A(f's_add_u32 {s(sT+3)}, {s(aCBA)}, {ST_OFF + (n-1)*ST_STR}')
        lo = [f'buffer_load_dwordx4 {v(STR+4*q,4)}, {v(vL0)}, {WS}, {s(sT+3)} offen offset:{q*KB} sc1' for q in range(4)]
        red = [f'v_min3_u32 {v(vP)}, {v(STR)}, {v(STR+1)}, {v(STR+2)}',
               f'v_min3_u32 {v(vP+1)}, {v(STR+3)}, {v(STR+4)}, {v(STR+5)}',
               f'v_min3_u32 {v(vP+2)}, {v(STR+6)}, {v(STR+7)}, {v(STR+8)}',
               f'v_min3_u32 {v(vP+3)}, {v(STR+9)}, {v(STR+10)}, {v(STR+11)}',
               f'v_min3_u32 {v(vP)}, {v(vP)}, {v(STR+12)}, {v(STR+13)}',
               f'v_min3_u32 {v(vP+1)}, {v(vP+1)}, {v(vP+2)}, {v(vP+3)}',
               f'v_min_u32 {v(vP)}, {v(vP)}, {v(vP+1)}',
               f'v_cmp_ne_u32 {mP}, 0, {v(vP)}']
        poll_loop(lo, red, [f's_cmp_eq_u64 {mP}, exec'])
        acquire()
    def pf_until_stats(n, sbeg, nbytes, name):
        D = name + '_done'
        A(f's_add_u32 {s(sT+1)}, {s(sbeg)}, {nbytes}')
        A(f's_add_u32 {s(sT+3)}, {s(aCBA)}, {ST_OFF + (n-1)*ST_STR}')
        A.label(name)
        A.blind(f'buffer_load_dwordx4 {v(STR,4)}, {v(vL0)}, {WS}, {s(sT+3)} offen offset:{3*KB} sc1')
        for i in range(12):
            if i % 4 == 0 and i: A(f's_add_u32 {s(sbeg)}, {s(sbeg)}, 4096')
            A.blind(f'buffer_load_dwordx4 {v(W0+4*i,4)}, {v(vL0)}, {WS}, {s(sbeg)} offen offset:{(i%4)*KB} sc1')
        A(f's_add_u32 {s(sbeg)}, {s(sbeg)}, 4096')
        A._wait_vm(12)
        A(f'v_or_b32 {v(vP)}, {v(STR)}, {v(STR+1)}')
        A(f'v_cmp_ne_u32 {mP}, 0, {v(vP)}')
        A(f's_cmp_lg_u64 {mP}, 0')
        A(f's_cbranch_scc1 {D}')
        A(f's_cmp_lt_u32 {s(sbeg)}, {s(sT+1)}')
        A(f's_cbranch_scc1 {name}')
        A.label(D)
    def stat_sum(vm):
        o = []
        for c in range(1, 7): o.append(f'v_add_f32 {v(STR)}, {v(STR)}, {v(STR+c)}')
        for c in range(8, 14): o.append(f'v_add_f32 {v(STR+7)}, {v(STR+7)}, {v(STR+c)}')
        o.append(f'v_add_f32 {v(vm)}, {v(STR)}, {v(STR+7)}')
        return o
    def stat_tail(M, vm, vve, vr):
        return [f'v_mov_b32 {v(vve)}, {v(vm)}',
                f'v_mov_b32 {v(M+2)}, 0',
                f'v_permlane32_swap_b32 {v(vm)}, {v(vve)}',
                f'v_mul_f32 {v(vm)}, {f32(-1.0/448)}, {v(vm)}',
                f'v_mul_f32 {v(vve)}, {f32(1.0/448)}, {v(vve)}',
                f'v_cvt_pk_bf16_f32 {v(M)}, {v(vm)}, {v(vm)}',
                f'v_fma_f32 {v(vve)}, -{v(vm)}, {v(vm)}, {v(vve)}',
                f'v_and_b32 {v(M+1)}, 0xffff0000, {v(M)}',
                f'v_max_f32 {v(vve)}, 0, {v(vve)}',
                f'v_sub_f32 {v(M+1)}, {v(vm)}, {v(M+1)}',
                f'v_add_f32 {v(vve)}, {f32(1e-5)}, {v(vve)}',
                f'v_cvt_pk_bf16_f32 {v(M+1)}, {v(M+1)}, {v(M+2)}',
                (f'v_rsq_f32 {v(vr)}, {v(vve)}', 2),
                f'v_mov_b32 {v(M+2)}, {v(M)}',
                f'v_mov_b32 {v(M+3)}, {v(M+1)}']
    def tile_store(ACC, n):
        for d in range(4): A(f'v_cvt_pk_bf16_f32 {v(vRES+d)}, {v(ACC+2*d)}, {v(ACC+2*d+1)}')
        xs = 'sc1' if n == 1 else ''
        A(f'buffer_store_dwordx4 {v(vRES,4)}, {v(vL0)}, {WS}, {s(aXO)} offen {xs}')
        for d in range(4, 8): A(f'v_cvt_pk_bf16_f32 {v(vRES+d)}, {v(ACC+2*d)}, {v(ACC+2*d+1)}')
        A(f'buffer_store_dwordx4 {v(vRES+4,4)}, {v(vL0)}, {WS}, {s(aXO)} offen offset:1024 {xs}')
        A(f'v_mov_b32 {v(vt0)}, 0'); A(f'v_mov_b32 {v(vt1)}, 0')
        for d in range(8): A(f'v_dot2c_f32_bf16 {v(vt0)}, {s(sONES)}, {v(vRES+d)}')
        for d in range(8): A(f'v_dot2c_f32_bf16 {v(vt1)}, {v(vRES+d)}, {v(vRES+d)}')
        A(f's_add_u32 {s(sT)}, {s(aSTO)}, {(n-1)*ST_STR}')
        A(f'v_permlane32_swap_b32 {v(vt0)}, {v(vt1)}')
        A(f'v_add_f32 {v(vt0)}, {v(vt0)}, {v(vt1)}')
        A(f'v_or_b32 {v(vt0)}, 1, {v(vt0)}')
        A.wait_vm_all()
        publish(lambda sc: A(f'buffer_store_dword {v(vt0)}, {v(vL0)}, {WS}, {s(sT)} offen {sc}'))
    def dump_ts(l):
        if not ts: return
        A.wait_lg_all(force=True)
        A(f's_lshl_b32 {s(sT)}, s2, 2')
        A(f's_add_u32 {s(sT)}, {s(sT)}, {s(sW)}')
        A(f's_mul_i32 {s(sT)}, {s(sT)}, {2*NS*4}')
        A(f's_add_u32 {s(sT)}, {s(sT)}, {TS + l*NS*4}')
        A('s_mov_b64 exec, 1')
        for i in range(NS):
            A(f'v_mov_b32 {v(W0+i)}, {s(tsreg(i))}')
            A(f'buffer_store_dword {v(W0+i)}, {v(vL4)}, {WS}, {s(sT)} offen offset:{4*i}')
        A('s_mov_b64 exec, -1')

    X = W0; AK = 136; AV = 152; AQ = 168; WB = 184; M = 208; TMP = 212; RR = 224; RL = 240
    vm_, vve_, vr_, vrl_ = TMP+8, TMP+9, TMP+10, TMP+11
    T2 = TMP
    NX0 = 8
    t0, t1, t2, t3 = sT, sT+1, sT+2, sT+3
    tta, tto, cto = 4, 5, 6

    JST = 128*KB; JH = 14*KB
    A.label('M_start')
    A('s_cmp_ge_u32 s2, 256')
    A('s_cbranch_scc1 M_end')
    stamp(0, 255)
    KP = 24
    A(f's_load_dwordx8 {s(KP,8)}, s[0:1], 0')
    A(f's_load_dwordx8 {s(KP+8,8)}, s[0:1], 32')
    A(f's_load_dwordx4 {s(KP+16,4)}, s[0:1], 64')
    A('s_getpc_b64 s[64:65]')
    A.label('M_pc')
    A('s_sub_u32 s64, s64, M_pc-M_start')
    A('s_subb_u32 s65, s65, 0')
    A('s_mov_b32 s66, M_last-M_start')
    A('s_mov_b32 s67, 0x00020000')
    A(f's_lshr_b32 {s(sIDX)}, s2, 3')
    A(f's_lshl_b32 {s(t2)}, {s(sIDX)}, 12')
    A(f'v_lshl_add_u32 {v(vt0)}, v0, 4, {s(t2)}')
    if cwarm: A.blind(f'buffer_load_dwordx4 {v(vP,4)}, {v(vt0)}, {JB}, 0 offen')
    if ts:
        for i_ in range(84, 100): A(f's_mov_b32 {s(i_)}, 0')
    A(f's_and_b32 {s(sGRP)}, s2, 7')
    A(f's_and_b32 {s(sC16)}, {s(sIDX)}, 15')
    A(f'v_lshrrev_b32 {v(vt0)}, 6, v0')
    A(f'v_and_b32 {v(vt1)}, 63, v0')
    A(f'v_readfirstlane_b32 {s(sW)}, {v(vt0)}')
    vI, vG, vMA, vMB, vJO, vJR, vCS, vXO = 200, 201, 202, 203, 204, 205, 206, 207
    ZR_ = 184; vZO = 194; vRDY = 193
    def sel(dst, q, w13, w2, wo):
        big = lambda x: isinstance(x, int) and not -16 <= x <= 64
        A('s_cmp_ge_u32 s2, 216')
        if big(wo) and big(w2) and wo != w2:
            A(f's_mov_b32 {s(dst)}, {w2}'); A(f's_cselect_b32 {s(dst)}, {wo}, {s(dst)}')
        else: A(f's_cselect_b32 {s(dst)}, {wo}, {w2}')
        A('s_cmp_lt_u32 s2, 160'); A(f's_cselect_b32 {s(dst)}, {w13}, {s(dst)}')
        A('s_cmp_lt_u32 s2, 48');  A(f's_cselect_b32 {s(dst)}, {q}, {s(dst)}')
    sel(jP, 2688, 3584, 896, 896)
    A(f'v_lshrrev_b32 {v(vJO)}, 3, {v(vt1)}')
    A(f'v_mul_lo_u32 {v(vJO)}, {v(vJO)}, {s(jP)}')
    A(f'v_and_b32 {v(vt0)}, 7, {v(vt1)}')
    A(f'v_lshl_add_u32 {v(vJO)}, {v(vt0)}, 4, {v(vJO)}')
    jJ, jR, jC = 44, 46, 47
    sel(3, 0, 48, 160, 216)
    A(f's_sub_u32 {s(jJ)}, s2, s3')
    sel(3, 2, 2, 3, 1)
    A(f's_lshr_b32 {s(jC)}, {s(jJ)}, s3')
    A(f's_lshl_b32 s4, {s(jC)}, s3')
    A(f's_sub_u32 {s(jR)}, {s(jJ)}, s4')
    A(f's_mul_i32 {s(t1)}, {s(jC)}, 11')
    A(f's_lshr_b32 {s(t1)}, {s(t1)}, 5')
    A(f's_mul_i32 {s(t0)}, {s(t1)}, 3')
    A(f's_sub_u32 {s(t0)}, {s(jC)}, {s(t0)}')
    A(f's_add_u32 s3, {s(t0)}, 1')
    A(f's_cmp_eq_u32 {s(t0)}, 2')
    A('s_cselect_b32 s3, 0, s3')
    A('s_mul_i32 s3, s3, 896')
    A(f's_mul_i32 s4, {s(t1)}, 224')
    A('s_add_u32 s3, s3, s4')
    A(f's_lshl_b32 s4, {s(jC)}, 7')
    sel(jOA, 's3', 's4', 's4', 's4')
    sel(3, 112*2688, 112*3584, 224*896, 224*896)
    A(f's_mul_i32 s3, s3, {s(jR)}')
    A(f's_add_u32 {s(jOA)}, {s(jOA)}, s3')
    sel(jOB, 128, 0, 112*896, 112*896)
    A(f's_add_u32 {s(jOB)}, {s(jOB)}, {s(jOA)}')
    A(f's_lshl_b32 {s(jRS)}, {s(jP)}, 3')
    sel(62, 448*1344*2, 448*1792*2, 1792*448*2, 448*448*2)
    A('s_cmp_ge_u32 s2, 230')
    A('s_cselect_b32 s62, 0, s62')
    A('s_mov_b32 s63, 0x00020000')
    A(f's_cmp_ge_u32 {s(sW)}, 2')
    A(f's_cselect_b32 {s(jOA)}, {s(jOB)}, {s(jOA)}')
    A(f's_cselect_b32 s5, 2, 0')
    A(f's_and_b32 s3, {s(sW)}, 1')
    A(f's_mul_i32 s4, s3, {s(jRS)}')
    A('s_mul_i32 s4, s4, 7')
    A(f's_add_u32 {s(jOA)}, {s(jOA)}, s4')
    A(f's_mul_i32 {s(jLB)}, {s(sW)}, {7*KB}')
    A(f's_add_u32 {s(jLB)}, {s(jLB)}, {JST}')
    A('s_cmp_lg_u32 s5, 0')
    A(f's_cselect_b32 s3, {s(KP+10)}, {s(KP+8)}'); A(f's_cselect_b32 s4, {s(KP+11)}, {s(KP+9)}')
    sel(60, s(KP+2), 's3', s(KP+12), s(KP+4)); sel(61, s(KP+3), 's4', s(KP+13), s(KP+5))
    A(f's_mov_b32 s8, {s(KP+18)}'); A(f's_mov_b32 s9, {s(KP+19)}')
    A(f's_mov_b32 s10, {WS_BYTES}'); A('s_mov_b32 s11, 0x00020000')
    A('s_cmp_eq_u32 s2, 255')
    A(f's_cselect_b32 s3, 0, {1 << 30}')
    A(f'v_lshl_add_u32 {v(vZO)}, v0, 4, s3')
    for d in range(4): A(f'v_mov_b32 {v(ZR_+d)}, 0')
    A('s_cbranch_scc0 J_noz')
    for n in range(3):
        A(f's_mov_b32 s3, {PF + n*4096}')
        A(f'buffer_store_dwordx4 {v(ZR_,4)}, {v(vZO)}, {WS}, s3 offen sc1')
    A.label('J_noz')
    for n in range(7):
        if n: A(f's_add_u32 {s(jOA)}, {s(jOA)}, {s(jRS)}')
        A(f's_add_u32 m0, {s(jLB)}, {n*KB}')
        A(f'buffer_load_dwordx4 {v(vJO)}, {JA}, {s(jOA)} offen lds', tok='job')
    stamp(19, 8)
    for d_, k_ in ((68, 0), (72, 16), (12, 14)):
        A(f's_mov_b32 {s(d_)}, {s(KP+k_)}'); A(f's_mov_b32 {s(d_+1)}, {s(KP+k_+1)}')
    A(f's_mov_b32 s70, {2048*448*2}'); A('s_mov_b32 s71, 0x00020000')
    A('s_mov_b32 s74, 256'); A('s_mov_b32 s75, 0x00020000')
    A(f's_lshr_b32 s3, {s(sIDX)}, 4')
    A('s_lshl_b32 s3, s3, 2')
    A(f's_lshl_b32 s7, {s(sGRP)}, 3')
    A(f's_add_u32 {s(tta)}, s3, s7')
    A(f's_add_u32 {s(tta)}, {s(tta)}, {s(sW)}')
    A(f's_mul_i32 {s(aXA)}, {s(tta)}, {28*KB}')
    A(f's_mul_i32 {s(jNG)}, {s(sW)}, {28*KB}')
    vXA, vXB = 198, 199
    A(f'v_lshrrev_b32 {v(vI)}, 3, {v(vt1)}')
    A(f'v_lshrrev_b32 {v(vG)}, 4, {v(vt1)}')
    A(f'v_xor_b32 {v(vt0)}, {v(vt0)}, {v(vG)}')
    A(f'v_mul_u32_u24 {v(vXA)}, 896, {v(vI)}')
    A(f'v_xor_b32 {v(vG)}, 4, {v(vt0)}')
    A(f'v_lshl_add_u32 {v(vXB)}, {v(vG)}, 4, {v(vXA)}')
    A(f'v_lshl_add_u32 {v(vXA)}, {v(vt0)}, 4, {v(vXA)}')
    xraw = []
    for b_ in range(7):
        for rg in range(4):
            xraw.append([f's_add_u32 {s(jLB)}, {s(aXA)}, {rg*8*896 + b_*128}',
                         f's_add_u32 m0, {s(jNG)}, {(b_*4+rg)*KB}',
                         (lambda rg=rg, b_=b_: A(f'buffer_load_dwordx4 {v(vXB if rg & 1 else vXA)}, {XS}, {s(jLB)} offen lds', tok=('x', b_)))])
    vDJ, vD8, vDC = 195, 196, 197
    def params():
        A(f'v_and_b32 {v(vI)}, 31, {v(vt1)}')
        A(f'v_lshrrev_b32 {v(vG)}, 5, {v(vt1)}')
        A(f'v_lshlrev_b32 {v(vL0)}, 4, {v(vt1)}')
        A(f'v_lshlrev_b32 {v(vL4)}, 2, {v(vt1)}')
        A(f'v_lshlrev_b32 {v(vt0)}, 20, {v(vI)}')
        A(f'v_min_u32 {v(vt0)}, {WS_USED - 0x100000}, {v(vt0)}')
        A(f's_mov_b32 {s(t2)}, {0x100000 - 128}')
        if tlb: A.blind(f'buffer_load_dword {v(vP)}, {v(vt0)}, {WS}, {s(t2)} offen sc1')
        A(f's_lshl_b32 s3, {s(t1)}, 2')
        A(f's_add_u32 s3, s3, {s(sW)}')
        A('s_mul_i32 s3, s3, 3')
        A(f's_add_u32 s3, s3, {s(t0)}')
        A(f's_mul_i32 s3, s3, {T}')
        assert PWQKV == 0
        A(f's_lshl_b32 s5, {s(jC)}, 2')
        A(f's_add_u32 s5, s5, {s(sW)}')
        A(f's_mul_i32 s5, s5, {T}')
        A(f's_add_u32 s5, s5, {PW13}')
        sel(jCS, 's3', 's5', 0, 0)
        A(f's_mul_i32 s6, {s(jR)}, {7*KB}')
        A(f's_add_u32 {s(jDST)}, {s(jCS)}, s6')
        A(f's_lshl_b32 s3, {s(jC)}, 1')
        A(f's_and_b32 s5, {s(sW)}, 1')
        A('s_add_u32 s3, s3, s5')
        A(f's_lshl_b32 s5, {s(jR)}, 1')
        A(f's_lshr_b32 s6, {s(sW)}, 1')
        A('s_add_u32 s5, s5, s6')
        A(f's_mul_i32 s6, s3, {112*KB}')
        A(f's_mul_i32 {s(t2)}, s5, {7*KB}')
        A(f's_add_u32 s6, s6, {s(t2)}')
        A(f's_add_u32 s6, s6, {PW2}')
        A('s_lshl_b32 s3, s3, 15')
        A('s_lshl_b32 s5, s5, 13')
        A('s_add_u32 s3, s3, s5')
        A(f's_add_u32 s3, s3, {PWO}')
        A(f's_mov_b32 s5, {s(jDST)}')
        sel(jDST, 's5', 's5', 's6', 's3')
        A('s_cmp_ge_u32 s2, 230')
        A(f's_cselect_b32 s3, {1 << 30}, 0')
        A(f's_cselect_b32 {s(jDST)}, 0, {s(jDST)}')
        A(f'v_add_u32 {v(vDJ)}, s3, {v(vL0)}')
        sel(3, 1 << 30, 1 << 30, 1 << 30, 0)
        A(f'v_or_b32 {v(vD8)}, s3, {v(vDJ)}')
        sel(3, 0, 0, 1 << 30, 1 << 30)
        A(f'v_lshlrev_b32 {v(vDC)}, 30, {v(vG)}')
        A(f'v_or3_b32 {v(vDC)}, s3, {v(vDC)}, {v(vL0)}')
        A(f's_lshr_b32 s3, {s(jR)}, 1'); A('s_lshl_b32 s3, s3, 9')
        A(f's_and_b32 s5, {s(jR)}, 1'); A('s_lshl_b32 s5, s5, 3')
        A('s_add_u32 s3, s3, s5')
        A(f's_add_u32 {s(jCS)}, {s(jCS)}, s3')
        A(f's_add_u32 {s(jCS)}, {s(jCS)}, {28*KB}')
        sel(3, 28, 32, 32, 32)
        A(f'v_cmp_gt_u32 {mP}, s3, {v(vI)}')
        A(f'v_cndmask_b32 {v(vMA)}, 0, -1, {mP}')
        sel(3, 2, 2, 2, 1)
        A(f'v_cmp_gt_u32 {mP}, s3, {v(vG)}')
        A(f'v_cndmask_b32 {v(vMB)}, 0, {v(vMA)}, {mP}')
        A(f's_mul_i32 s3, {s(sW)}, 56')
        A(f's_lshl_b32 s5, {s(sW)}, 5')
        A(f's_lshl_b32 s6, {s(sW)}, 6')
        sel(jOB, 's3', 's5', 's6', 's6')
        sel(3, 32, 128, 32, 32)
        A(f'v_bfe_u32 {v(vt0)}, {v(vt1)}, 4, 1')
        A(f'v_mul_lo_u32 {v(vJR)}, {v(vt0)}, s3')
        A(f'v_and_b32 {v(vt0)}, 3, {v(vt1)}')
        A(f'v_lshl_add_u32 {v(vJR)}, {v(vt0)}, 3, {v(vJR)}')
        A(f'v_add_u32 {v(vJR)}, {s(jOB)}, {v(vJR)}')
        A(f'v_lshrrev_b32 {v(vt0)}, 7, {v(vJR)}')
        A(f'v_and_b32 {v(vJR)}, 127, {v(vJR)}')
        A(f'v_mul_u32_u24 {v(vt0)}, {JH}, {v(vt0)}')
        A(f'v_add3_u32 {v(vJR)}, {v(vJR)}, {v(vt0)}, {v(vL2)}') if False else A(f'v_add_u32 {v(vJR)}, {v(vJR)}, {v(vt0)}')
        A(f'v_bfe_u32 {v(vt0)}, {v(vt1)}, 2, 2')
        A(f'v_lshl_add_u32 {v(vt0)}, {v(vG)}, 2, {v(vt0)}')
        A(f'v_lshl_add_u32 {v(vJR)}, {v(vt0)}, 7, {v(vJR)}')
        A(f'v_add_u32 {v(vJR)}, {JST}, {v(vJR)}')
        sel(jRS, 32*128, 32*128, 32*128, 28*128)
        A(f's_mov_b32 {s(sONES)}, {ONES}')
        A(f'v_mov_b32 {v(vCS)}, 0')
        A(f's_mov_b32 {s(t1)}, s7')
    B = Asm(); realA = A.__dict__.copy()
    A.lines = []; A.hist = []; params(); plines = [x.strip() for x in A.lines if 's_nop' not in x]
    A.__dict__.update(realA)
    groups = []; cur = []
    for x in plines:
        if cur and not x.startswith(('s_cselect', 's_subb', 's_addc')) and not (x.startswith('s_mov') and cur[-1].startswith('s_cmp')):
            groups.append(cur); cur = []
        cur.append(x)
    groups.append(cur)
    ps = Stream(groups, len(groups) / max(nxa, 1) + 1e-6)
    sched(A, xraw[:nxa], [ps], flush=[ps])
    stamp(13, 8)
    A(f'v_mov_b32 {v(vRDY)}, 1')
    A(f'v_lshlrev_b32 {v(vZO)}, 8, {v(vZO)}') if False else A(f'v_lshl_or_b32 {v(vZO)}, v0, 8, {v(vZO)}')
    A.wait_vm_tok('job')
    A('s_barrier')
    A(f'buffer_store_dword {v(vRDY)}, {v(vZO)}, {DBG}, 0 offen sc1')
    JBF = 136
    for pr in range(4):
        b = JBF + 8*pr
        for u in range(2):
            for p in range(2):
                A(f'ds_read_b64_tr_b16 {v(b+4*u+2*p,2)}, {v(vJR)} offset:{u*2048+p*1024}')
        if pr < 3: A(f'v_add_u32 {v(vJR)}, {s(jRS)}, {v(vJR)}')
    A(f's_add_u32 {s(t2)}, {s(jDST)}, 4096')
    for pr in range(4):
        b = JBF + 8*pr
        for u in range(2):
            for d in range(4*u, 4*u+4):
                A(f'v_and_b32 {v(b+d)}, {v(b+d)}, {v(vMB if d >= 6 else vMA)}')
            f_ = 2*pr + u
            so = s(jDST) if f_ < 4 else s(t2)
            A(f'buffer_store_dwordx4 {v(b+4*u,4)}, {v(vDJ if f_ < 7 else vD8)}, {WS}, {so} offen offset:{(f_%4)*KB} sc1')
    for d in range(28): A(f'v_dot2c_f32_bf16 {v(vCS)}, {s(sONES)}, {v(JBF+d)}')
    C = 176
    A(f'v_mov_b32 {v(C)}, {v(vCS)}')
    A(f'v_permlane32_swap_b32 {v(C)}, {v(vCS)}')
    A(f'v_add_f32 {v(C)}, {v(C)}, {v(vCS)}')
    A(f'v_cvt_pk_bf16_f32 {v(C+1)}, {v(C)}, {v(C)}')
    A(f'v_and_b32 {v(C+2)}, 0xffff0000, {v(C+1)}')
    A(f'v_sub_f32 {v(C+2)}, {v(C)}, {v(C+2)}')
    A(f'v_cvt_pk_bf16_f32 {v(C+4)}, {v(C)}, {v(C+2)}')
    A(f'v_and_b32 {v(C+5)}, 0xffff, {v(C+1)}')
    A(f'buffer_store_dwordx2 {v(C+4,2)}, {v(vDC)}, {WS}, {s(jCS)} offen sc1')
    stamp(14, 8)
    setup = []
    S_ = setup.append
    S_(f'v_add_u32 {v(vL1)}, 0x10000, {v(vL0)}')
    S_(f'v_add_u32 {v(vL2)}, 0x20000, {v(vL0)}')
    S_(f's_mul_i32 {s(t0)}, {s(sIDX)}, 37')
    S_(f's_lshr_b32 {s(t0)}, {s(t0)}, 8')
    S_(f's_mul_i32 {s(t2)}, {s(t0)}, 7')
    S_(f's_sub_u32 {s(cto)}, {s(sIDX)}, {s(t2)}')
    S_(f's_lshl_b32 {s(cto)}, {s(cto)}, 1')
    S_(f's_and_b32 {s(t2)}, {s(sW)}, 1')
    S_(f's_add_u32 {s(cto)}, {s(cto)}, {s(t2)}')
    S_(f's_min_u32 {s(t0)}, {s(t0)}, 3')
    S_(f's_lshl_b32 {s(t0)}, {s(t0)}, 1')
    S_(f's_add_u32 {s(t0)}, {s(t0)}, {s(t1)}')
    S_(f's_lshr_b32 {s(t2)}, {s(sW)}, 1')
    S_(f's_add_u32 {s(tto)}, {s(t0)}, {s(t2)}')
    S_(f's_lshl_b32 {s(sSH8)}, {s(sW)}, 3')
    S_(f's_min_u32 {s(sSH8)}, {s(sSH8)}, 21')
    S_(f's_lshl_b32 {s(sSH8)}, {s(sSH8)}, 10')
    S_(f's_mul_i32 {s(sSH15)}, {s(sW)}, 15')
    S_(f's_min_u32 {s(sSH15)}, {s(sSH15)}, 43')
    S_(f's_lshl_b32 {s(sSH15)}, {s(sSH15)}, 10')
    S_(f's_mov_b32 {s(sLN2)}, {f32(LN2)}')
    S_('s_mov_b64 vcc, 0')
    S_('s_mov_b32 s48, 0x0fffffff'); S_('s_mov_b32 s49, 0x0fffffff')
    S_('s_mov_b32 s50, 0x10000000'); S_('s_mov_b32 s51, 0x10000000')
    S_('s_mov_b32 s52, -1'); S_('s_mov_b32 s53, 0')
    S_(f's_mov_b32 s14, {2048*448*2}'); S_('s_mov_b32 s15, 0x00020000')
    S_(f'v_mov_b32 {v(vc0)}, {f32(1e-6)}')
    S_(f'v_mov_b32 {v(vc1)}, {ONES}')
    S_(f'v_bfe_u32 {v(vPH)}, {v(vt1)}, 2, 1')
    S_(f'v_mul_u32_u24 {v(vPH)}, {CB_STR}, {v(vPH)}')
    S_(f'v_and_b32 {v(vt0)}, 3, {v(vt1)}')
    S_(f'v_lshl_add_u32 {v(vPH)}, {v(vt0)}, 2, {v(vPH)}')
    S_(f'v_lshlrev_b32 {v(vRR)}, 4, {v(vG)}')
    S_(f's_lshl_b32 {s(t2)}, {s(sW)}, 8')
    S_(f's_add_u32 {s(t2)}, {s(t2)}, {RARR}')
    S_(f'v_add_u32 {v(vRR)}, {s(t2)}, {v(vRR)}')
    S_(f'v_add_u32 {v(vRW)}, {s(t2)}, {v(vL4)}')
    S_(f'v_lshlrev_b32 {v(vCI)}, 2, {v(vI)}')
    def lin(dst, base, *terms):
        first = True
        for reg, mul in terms:
            tt = dst if first else t3
            S_(f's_mul_i32 {s(tt)}, {s(reg)}, {mul}')
            if not first: S_(f's_add_u32 {s(dst)}, {s(dst)}, {s(t3)}')
            first = False
        if base: S_(f's_add_u32 {s(dst)}, {s(dst)}, {base}')
    lin(sOUT, 0, (tto, 28*KB), (cto, 64))
    lin(aXO, XF, (tto, 28*KB), (cto, 2*KB))
    lin(aCBA, CB, (tta, CB_STR))
    lin(aWQ, PWQKV, (sC16, 3*T))
    lin(aW13, PW13, (sC16, 7*T))
    lin(aPQW, PQ, (tta, 32*KB), (sC16, 2*KB))
    lin(aKVW, KV, (sC16, 4*KB), (sW, KB))
    lin(aFLR, CB + FL_OFF, (sGRP, 8*CB_STR))
    lin(aFLW, CB + FL_OFF, (sGRP, 8*CB_STR), (sIDX, 4))
    lin(aWO, PWO, (cto, 32*KB), (sW, 8*KB))
    lin(aKVR, KV, (sW, 16*KB))
    lin(aPQR, PQ, (tto, 32*KB), (sW, 8*KB))
    S_(f's_lshr_b32 {s(t1)}, {s(cto)}, 2')
    S_(f's_and_b32 {s(t2)}, {s(cto)}, 3')
    lin(aSTO, CB + ST_OFF, (tto, CB_STR), (t1, KB), (t2, 4))
    lin(aHW, HB, (tta, 112*KB), (sC16, 7*KB))
    lin(aFHW, CB + FH_OFF, (tta, CB_STR), (sC16, 4))
    lin(aFHR, CB + FH_OFF, (t0, CB_STR), (sW, 16))
    lin(aHR0, HB, (tto, 112*KB), (sW, 28*KB))
    S_(f's_xor_b32 {s(t1)}, {s(tto)}, 1')
    lin(aHR1, HB, (t1, 112*KB), (sW, 28*KB))
    lin(aW2a, PW2, (cto, 112*KB), (sW, 28*KB))
    S_(f's_xor_b32 {s(t1)}, {s(cto)}, 1')
    lin(aW2b, PW2, (t1, 112*KB), (sW, 28*KB))
    S_(f's_getreg_b32 {s(sXCC)}, hwreg(HW_REG_XCC_ID, 0, 4)')
    lin(7, CB, (tta, CB_STR), (sC16, KB))
    lin(3, KV - 14*KB, (tta, 2*KB), (sC16, KB))
    S_(f's_cmp_ge_u32 {s(sC16)}, 14')
    S_('s_cselect_b32 s7, s3, s7')
    S_(f'buffer_store_dwordx4 {v(ZR_,4)}, {v(vL0)}, {WS}, s7 offen sc1')
    S_(f'v_mul_u32_u24 {v(vXO)}, 896, {v(vI)}')
    S_(f'v_lshl_add_u32 {v(vXO)}, {v(vG)}, 4, {v(vXO)}')
    S_(f's_or_b32 {s(sXCC)}, {s(sXCC)}, 0x80')
    run(setup)
    NXE = nxe
    A(f'v_mov_b32 {v(vZO)}, 0')
    rdl = f'buffer_load_dword {v(vRDY)}, {v(vZO)}, {DBG}, 0 offen sc1'
    A(rdl)
    run(xraw[nxa:nxa+NXE])
    A(f'v_mov_b32 {v(vMA)}, {s(sXCC)}')
    A('s_lshl_b32 s3, s2, 7')
    A(f's_add_u32 s3, s3, {PF}')
    A(f's_lshl_b32 {s(t3)}, {s(sIDX)}, 7')
    A(f's_lshl_b32 {s(t2)}, {s(sGRP)}, 2')
    A(f's_add_u32 {s(t3)}, {s(t3)}, {s(t2)}')
    A(f's_add_u32 {s(t3)}, {s(t3)}, {PFD}')
    A._wait_vm(NXE)
    A('s_barrier')
    stamp(15, 8)
    snk = A.snapshot()
    A(f's_cmp_lg_u32 {s(sW)}, 0')
    A('s_cbranch_scc1 J_nopk')
    A(f'v_cmp_ne_u32 {mP}, 0, {v(vRDY)}')
    A(f's_cmp_eq_u64 {mP}, exec')
    A('s_cbranch_scc1 J_rdy')
    poll_loop([rdl], [f'v_cmp_ne_u32 {mP}, 0, {v(vRDY)}'], [f's_cmp_eq_u64 {mP}, exec'])
    A.label('J_rdy')
    A('s_mov_b64 exec, 1')
    A('s_cmp_ge_u32 s2, 48')
    A('s_cbranch_scc1 J_nopk2')
    A(f'buffer_store_dword {v(vMA)}, {v(vL4)}, {WS}, s3 offen sc1')
    A.label('J_nopk2')
    A(f'buffer_store_dword {v(vMA)}, {v(vL4)}, {WS}, {s(t3)} offen sc1')
    A('s_mov_b64 exec, -1')
    A.label('J_nopk'); A.restore(snk)
    stamp(20, 8)
    run(xraw[nxa+NXE:])
    A(f's_add_u32 {s(aXA)}, {s(aXA)}, {XF}')
    A(f'v_lshrrev_b32 {v(vt0)}, 3, {v(vI)}')
    A(f'v_lshlrev_b32 {v(vJO)}, 10, {v(vt0)}')
    A(f'v_and_b32 {v(vt0)}, 7, {v(vI)}')
    A(f'v_lshl_add_u32 {v(vJO)}, {v(vt0)}, 7, {v(vJO)}')
    A(f'v_add_u32 {v(vJO)}, {s(jNG)}, {v(vJO)}')
    A(f'v_bfe_u32 {v(vt0)}, {v(vI)}, 1, 3')
    A(f'v_xor_b32 {v(vt0)}, {v(vt0)}, {v(vG)}')
    XR = 188
    for k_ in range(4):
        A(f'v_xor_b32 {v(vt1)}, {2*k_}, {v(vt0)}')
        A(f'v_lshl_add_u32 {v(XR+k_)}, {v(vt1)}, 4, {v(vJO)}')
    A(f'v_mov_b32 {v(vm_)}, 0'); A(f'v_mov_b32 {v(vve_)}, 0')
    def xproc(t):
        b = X + 4*t
        return [f'v_dot2c_f32_bf16 {v(vm_)}, {s(sONES)}, {v(b+d)}' for d in range(4)] + \
               [f'v_dot2c_f32_bf16 {v(vve_)}, {v(b+d)}, {v(b+d)}' for d in range(4)] + \
               [f'v_permlane32_swap_b32 {v(b)}, {v(b+2)}', f'v_permlane32_swap_b32 {v(b+1)}, {v(b+3)}']
    NPRE = 12
    for b_ in range(7):
        A.wait_vm_tok(('x', b_))
        for k_ in range(4): A(f'ds_read_b128 {v(X+4*(4*b_+k_),4)}, {v(XR+k_)} offset:{b_*4*KB}')
        if 1 <= b_ <= NPRE//4:
            for k_ in range(4): run(xproc(4*(b_-1)+k_))
    stamp(16, 8)
    A(f's_lshr_b32 {s(t2)}, {s(sC16)}, 2')
    A(f's_mul_i32 {s(t2)}, {s(t2)}, {12*128}')
    A(f's_add_u32 {s(t2)}, {s(t2)}, {PF}')
    A(f'v_min_u32 {v(vt1)}, 44, {v(vL4)}')
    A(f'v_lshlrev_b32 {v(vt1)}, 5, {v(vt1)}')
    A.wait_lg_all()
    A(f's_cmp_lg_u32 {s(sW)}, 0')
    sn = A.snapshot()
    A('s_cbranch_scc1 J_nopoll')
    poll_loop([f'buffer_load_dword {v(vP)}, {v(vt1)}, {WS}, {s(t2)} offen sc1'], [f'v_cmp_ne_u32 {mP}, 0, {v(vP)}'], [f's_cmp_eq_u64 {mP}, exec'])
    A.label('J_nopoll'); A.restore(sn)
    A('s_barrier')
    stamp(17, 8)
    A(f's_lshl_b32 {s(t0)}, {s(sW)}, 10')
    A(f's_add_u32 {s(t1)}, {s(t0)}, {s(aWQ)}')
    wl = []
    for i_ in range(8):
        for m_, sl in ((0, SA), (1, SB)):
            o_ = min(4*i_, 25) * KB
            wl.append([f's_add_u32 {s(t2)}, {s(t1)}, {m_*T + o_}', f's_add_u32 m0, {s(t0)}, {sl + o_}',
                       (lambda i_=i_: A(f'buffer_load_dwordx4 {v(vL0)}, {WS}, {s(t2)} offen sc1 lds', tok='wkv0' if i_ < 4 else 'wkv1'))])
    wl += dma(SC_, aWQ, 2*T, 8, sSH8, t2, 'wq')
    wl += [f'buffer_load_dwordx4 {v(vRES+4*u,4)}, {v(vXO)}, {XS}, {s(sOUT)} offen offset:{32*u}' for u in range(2)]
    xs_ = Stream([y for t in range(NPRE, 28) for y in xproc(t)], 10)
    sched(A, wl[:16], [xs_], flush=[xs_])
    A(f'v_permlane32_swap_b32 {v(vm_)}, {v(vve_)}')
    A(f'v_add_f32 {v(vm_)}, {v(vm_)}, {v(vve_)}')
    run(wl[24:])
    if ts:
        for i in range(60, 84): A(f's_mov_b32 {s(i)}, 0')

    aW13s, aWQs = 4, 5
    A(f's_add_u32 {s(aW13s)}, {s(aW13)}, {s(sSH8)}')
    A(f's_add_u32 {s(aWQs)}, {s(aWQ)}, {s(sSH8)}')
    def nfrag(dsts, sbase, st, sc='sc1', base=0, lat=90, stream='vm', rel0=0, drel=0, prio=0, xr=(), anc=None):
        out = []
        for n, d in enumerate(dsts):
            off = base + (n//4)*4*KB
            it = [f's_add_u32 {s(st)}, {s(sbase)}, {off}'] if (off and n % 4 == 0) else []
            so = s(st) if off else s(sbase)
            it.append(f'buffer_load_dwordx4 {d}, {v(vL0)}, {WS}, {so} offen offset:{(n%4)*KB} {sc}')
            out.append(N(it, lat=lat, stream=stream, rel=rel0 + n*drel, prio=prio, xr=xr, anc=anc(n) if anc else None))
        return out
    def ndma(ldsbase, sbase, goff, n, ssh, st, tok, lat=100, rel0=0, drel=0, xr=(), prio=0, anc=None):
        out = []
        for i in range(n):
            it = []
            if i % 4 == 0:
                pre_ = {(aW13, sSH8): aW13s, (aWQ, sSH8): aWQs}.get((sbase, ssh))
                it.append(f's_add_u32 m0, {s(ssh)}, {ldsbase + i*KB}')
                if pre_: it.append(f's_add_u32 {s(st)}, {s(pre_)}, {goff + i*KB}')
                else:
                    it.append(f's_add_u32 {s(st)}, {s(sbase)}, {s(ssh)}')
                    if goff + i*KB: it.append(f's_add_u32 {s(st)}, {s(st)}, {goff + i*KB}')
            it.append(f'buffer_load_dwordx4 {v(vL0)}, {WS}, {s(st)} offen offset:{(i%4)*KB} sc1 lds')
            nd = N(it, tok=tok, stream='dma', rel=rel0 + i*drel, xr=xr, xw=[('dma', tok)], prio=prio, anc=anc(i) if anc else None)
            nd.dmalat = lat
            out.append(nd)
        return out
    def nbar(xr=(), xw=(), vm=(), lg=(), rel=0, prio=0, anc=None):
        def pre():
            for tk in vm: A.wait_vm_tok(tk)
            for tk in lg: A.wait_lg_tok(tk)
        return N(['s_barrier'], xr=list(xr) + [('dma', tk) for tk in vm], xw=xw, pre=pre, stream='bar', rel=rel, prio=prio, anc=anc)
    def mark(nodes, pred, ids, lvl):
        if not (ts & lvl): return
        sel_ = [x for x in nodes if pred(x)]
        for k_, i_ in ids.items():
            sel_[k_].cb = (lambda i_=i_: stamp(i_, lvl))
    V = lambda lst, **kw: [N(x[0] if isinstance(x, tuple) else x, **kw) for x in lst]
    w2n = lambda a_, b_, **kw: [N([f's_add_u32 s3, {s(aW2a if i < 28 else aW2b)}, {((i%28)//4)*4*KB}',
                                   f'buffer_load_dwordx4 {a(4*i,4)}, {v(vL0)}, {WS}, s3 offen offset:{(i%4)*KB} sc1'],
                                  stream='w2', anc=kw['anc'](i-a_)) for i in range(a_, b_)]
    lin_ = lambda a0, d, n0=0: (lambda n: 0 if n < n0 else int(a0 + d*(n-n0)))
    def phi4(acc, j, scale):
        e = T2 + (j % 4) * 2; m = e + 1
        return [f'v_mul_f32 {v(acc+j)}, {v(acc+j)}, {v(scale)}',
                f'v_exp_f32 {v(e)}, {v(acc+j)} clamp',
                f'v_max_f32 {v(m)}, 0, {v(acc+j)}',
                f'v_fma_f32 {v(m)}, {v(m)}, {s(sLN2)}, {v(vc0)}',
                f'v_add_f32 {v(acc+j)}, {v(m)}, {v(e)}']
    W2A, W2B, W2C = w2a, w2b, 56

    def layer(l):
        L = lambda n: f'{n}{l}'
        WOV = 24; KVR = 56; PQR = 120; NUM = 184; ACC1 = 216; vRA = 248; vDN = 252
        wreg = lambda c, i: v(WOV+4*i,4) if c == 0 else a(224+4*i,4)
        def wo_load(c, i, st):
            return [f's_xor_b32 {s(st)}, {s(aWO)}, {c*0x8000 + (i//4)*4096}',
                    f'buffer_load_dwordx4 {wreg(c,i)}, {v(vL0)}, {WS}, {s(st)} offen offset:{(i%4)*KB} sc1']
        def red_addr(RB, vRA):
            o = []
            for x in (1, 2, 3):
                o.append([f's_xor_b32 s6, {s(sW)}, {x}', f's_mul_i32 s6, s6, {12*KB}', f's_add_u32 s6, s6, {RB + (x-1)*4*KB}', f'v_add_u32 {v(vRA+x)}, s6, {v(vL0)}'])
            o.append([f's_mul_i32 s6, {s(sW)}, {12*KB}', f's_add_u32 s6, s6, {RB}', f'v_add_u32 {v(vRA)}, s6, {v(vL0)}'])
            return o
        res_init = lambda D: [x for d in range(8) for x in (f'v_lshlrev_b32 {v(D+2*d)}, 16, {v(vRES+d)}', f'v_and_b32 {v(D+2*d+1)}, 0xffff0000, {v(vRES+d)}')]
        def red_early(acc, vRA, R1, R2, xr=()):
            o = [N(f'ds_write_b128 {v(vRA+2+c)}, {v(acc(1,c)+4*q,4)} offset:{q*KB}', tok='e', xw=['e'], xr=xr, lat=30) for c in range(2) for q in range(4)]
            o += [nbar(xr=['e'], xw=['ev'], lg=['e'])]
            o += [N(f'ds_read_b128 {v(R+4*q,4)}, {v(vRA)} offset:{x*4*KB + q*KB}', xr=['ev']) for x, R in ((1, R1), (2, R2)) for q in range(4)]
            o += V([f'v_add_f32 {v(R1+j)}, {v(R1+j)}, {v(R2+j)}' for j in range(16)])
            return o
        def red_final(acc, vRA, R1, R0):
            A0 = acc(0,0)
            o = [N(f'ds_write_b128 {v(vRA+1)}, {v(acc(0,1)+4*q,4)} offset:{q*KB}', tok='f', xw=['f'], lat=20) for q in range(4)]
            o += V([f'v_pk_add_f32 {v(A0+j,2)}, {v(A0+j,2)}, {v(R1+j,2)}' for j in range(0, 16, 2)])
            o += [nbar(xr=['f'], xw=['fv'], lg=['f'])]
            o += [N(f'ds_read_b128 {v(R0+4*q,4)}, {v(vRA)} offset:{q*KB}', xr=['fv']) for q in range(4)]
            o += V([f'v_pk_add_f32 {v(A0+j,2)}, {v(A0+j,2)}, {v(R0+j,2)}' for j in range(0, 16, 2)])
            return o
        if l: poll_stats(2)
        stamp(1)
        A(f's_lshl_b32 {s(sT)}, {s(sW)}, 12')
        A(f'v_add_u32 {v(vP+1)}, {s(sT)}, {v(vL0)}')
        A(f's_lshl_b32 {s(sT)}, {s(sW)}, 10')
        A(f'v_add_u32 {v(vP+2)}, {s(sT)}, {v(vL4)}')
        A(f's_add_u32 {s(sT+3)}, {s(aKVW)}, {l*KV_STR}')
        kb = lambda t: WB + 4*(t % 3); vb_ = lambda t: WB + 12 + 4*(t % 3)
        qb = lambda t: [kb(2), vb_(2), kb(0), vb_(0), kb(1), vb_(1)][t % 6]
        sf = (stat_sum(vm_) if l else []) + stat_tail(M, vm_, vve_, vr_)
        sf.append(f'v_mul_f32 {v(vrl_)}, {f32(LOG2E)}, {v(vr_)}')
        sf.append(f'v_cndmask_b32 {v(vt0)}, {v(vrl_)}, {v(vr_)}, {mLO}')
        stat_nodes = V(sf) + [N(f'ds_write_b32 {v(vRW)}, {v(vt0)}', xw=['rarr'], lat=2)]
        stat_nodes += [N(f'ds_read_b128 {v(RL+4*c,4)}, {v(vRR)} offset:{128 + 32*c}', xr=['rarr']) for c in range(4)]
        stat_nodes += [N(f'ds_read_b128 {v(RR+4*c,4)}, {v(vRR)} offset:{32*c}', xr=['rarr']) for c in range(4)]
        def kv_nodes(a_, b_):
            o = []
            for t in range(a_, b_):
                xa = v(X+4*t,4) if t < 28 else v(M,4)
                vis = ['kvlate'] if (l == 0 and t >= 16) else []
                o += [N(dsr(kb(t), SA + t*KB), xr=vis), N(dsr(vb_(t), SB + t*KB), xr=vis),
                      N(f'{MF} {v(AK,16)}, {xa}, {v(kb(t),4)}, {v(AK,16) if t else 0}', xr=['usek']),
                      N(f'{MF} {v(AV,16)}, {xa}, {v(vb_(t),4)}, {v(AV,16) if t else 0}')]
            return o
        nodes = []
        if l:
            nodes += nfrag([v(X+4*t,4) for t in range(28)], aXA, sT, lat=xlat, anc=lin_(1, 2, nx0))
            nodes += [nbar(xw=['freeD'], anc=30)]
            nodes += stat_nodes + kv_nodes(0, 29)
            nodes += ndma(SD, aW13, 0, 15, sSH15, sT+1, 'w13a', xr=['freeD'], anc=lin_(2*(28-nx0)+2, 1.3))
        else:
            A.wait_vm_tok('wkv0')
            A('s_barrier')
            A(f'v_lshlrev_b32 {v(vt1)}, 5, {v(vCI)}')
            A(f'v_lshrrev_b32 {v(vP)}, 3, {v(vL4)}')
            A(f'v_and_or_b32 {v(vt1)}, {v(vP)}, 16, {v(vt1)}')
            A(f's_mov_b32 {s(sT+2)}, {PFD}')
            PDV = AQ
            pdl = f'buffer_load_dwordx4 {v(PDV,4)}, {v(vt1)}, {WS}, {s(sT+2)} offen sc1'
            pdr = [f'v_min3_u32 {v(PDV+4)}, {v(PDV)}, {v(PDV+1)}, {v(PDV+2)}', f'v_min_u32 {v(PDV+4)}, {v(PDV+4)}, {v(PDV+3)}', f'v_cmp_ne_u32 {mP}, 0, {v(PDV+4)}']
            n0 = [N(pdl, stream='vm', anc=0)] + ndma(SC_, aWQ, 2*T, 8, sSH8, sT+1, 'wq', anc=lin_(1, 2)) + stat_nodes + kv_nodes(0, PDS)
            schedule(A, n0, verbose=vb, name='qkv0a')
            run(pdr)
            A(f's_cmp_eq_u64 {mP}, exec')
            sn = A.snapshot()
            A('s_cbranch_scc1 M_pdok')
            poll_loop([pdl], pdr, [f's_cmp_eq_u64 {mP}, exec'])
            A.label('M_pdok'); A.restore(sn)
            if fast:
                A(f's_and_b32 {s(sT)}, {s(sGRP)}, 1'); A(f's_cmp_lg_u32 {s(sT)}, 0'); A(f's_cselect_b64 {mP}, -1, 0')
                A(f'v_cndmask_b32 {v(PDV)}, {v(PDV)}, {v(PDV+1)}, {mP}')
                A(f'v_cndmask_b32 {v(PDV+2)}, {v(PDV+2)}, {v(PDV+3)}, {mP}')
                A(f's_and_b32 {s(sT)}, {s(sGRP)}, 2'); A(f's_cmp_lg_u32 {s(sT)}, 0'); A(f's_cselect_b64 {mP}, -1, 0')
                A(f'v_cndmask_b32 {v(PDV)}, {v(PDV)}, {v(PDV+2)}, {mP}')
                A(f'v_cmp_eq_u32 {mP}, {s(sXCC)}, {v(PDV)}')
                A(f's_cmp_ge_u32 {s(sGRP)}, 4')
                A(f's_cselect_b32 {s(sT)}, s55, s54')
                A(f's_cmp_eq_u32 {s(sT)}, -1')
                A('s_cselect_b64 vcc, -1, 0')
            stamp(18, 8)
            nodes += [nbar(xw=['kvlate'], vm=['wkv1'])]
            nodes += kv_nodes(PDS, 29)
            nodes += [nbar(xw=['visq'], vm=['wq'], anc=20)]
            nodes += V([f'v_permlane32_swap_b32 {v(vRES+4*u+k_)}, {v(vRES+4*u+k_+2)}' for u in range(2) for k_ in range(2)])
            nodes += ndma(SD, aW13, 0, 15, sSH15, sT+1, 'w13a', anc=lin_(1, 3.6))
            nodes += w2n(0, W2A, anc=lin_(2, 56/max(W2A,1)))
        for t in range(29):
            xa = v(X+4*t,4) if t < 28 else v(M,4)
            nodes += [N(dsr(qb(t), SC_ + t*KB), xr=['visq']),
                      N(f'{MF} {v(AQ,16)}, {v(qb(t),4)}, {xa}, {v(AQ,16) if t else 0}')]
        nq0 = 58 if l else 58 - 2*PDS
        nodes += [N(wo_load(0, i, 7), stream='wo', anc=nq0 + 4 + 2*i) for i in range(8)]
        for j in range(16): nodes += V(phi4(AK, j, RL+j))
        for d in range(8):
            nodes += V([f'v_cvt_pk_bf16_f32 {v(AK+d)}, {v(AK+2*d)}, {v(AK+2*d+1)}', f'v_cndmask_b32 {v(AK+d)}, 0, {v(AK+d)}, {mK}'])
        nodes += V([f'v_mul_f32 {v(AV+j)}, {v(AV+j)}, {v(RR+j)}' for j in range(16)])
        for d in range(8):
            nodes += V([f'v_cvt_pk_bf16_f32 {v(AV+d)}, {v(AV+2*d)}, {v(AV+2*d+1)}', f'v_cndmask_b32 {v(AV+d)}, {v(AV+d)}, {v(vc1)}, {mZ}'])
        KVA = RL
        nodes += [nbar(xw=['usek', 'kvbuf'])]
        nodes += [N(f'{MF} {v(KVA,16)}, {v(AK,4)}, {v(AV,4)}, 0'), N(f'{MF} {v(KVA,16)}, {v(AK+4,4)}, {v(AV+4,4)}, {v(KVA,16)}')]
        nodes += [N(f'ds_write_b128 {v(vP+1)}, {v(KVA+4*jq,4)} offset:{jq*KB}', tok='kvw', xr=['kvbuf'], xw=['kvw'], lat=20) for jq in range(4)]
        nodes += [nbar(xr=['kvw'], xw=['kvvis'], lg=['kvw'])]
        for n in range(4):
            b = RR + 4*n
            nodes += [N(f'ds_read_b32 {v(b+w2)}, {v(vP+2)} offset:{w2*4096 + n*256}', xr=['kvvis']) for w2 in range(4)]
            nodes += V([f'v_add_f32 {v(b)}, {v(b)}, {v(b+1)}', f'v_add_f32 {v(b+2)}, {v(b+2)}, {v(b+3)}', f'v_add_f32 {v(b)}, {v(b)}, {v(b+2)}'])
            nodes += [N(f'buffer_atomic_add_f32 {v(b)}, {v(vL4)}, {WS}, {s(sT+3)} offen offset:{n*256}', prio=0 if kvf else 300, tok='atm', xw=[('dma', 'atm')])]
            nodes[-1].dmalat = 200
        def kvflag():
            A(f's_cmp_lg_u32 {s(sW)}, 0')
            sn = A.snapshot()
            A(f's_cbranch_scc1 {L("M_nofk")}')
            publish(flag_store(s(aFLW), vc1, off=128*l), release=False)
            A.label(L('M_nofk')); A.restore(sn)
            stamp(2)
        if kvf:
            nodes += [nbar(vm=['atm'], prio=700)]
            nodes[-1].cb = kvflag; nodes[-1].wr.add(('c', 0))
        for j in range(16): nodes += V(phi4(AQ, j, vrl_))
        nodes += V([f'v_cvt_pk_bf16_f32 {v(AQ+d)}, {v(AQ+2*d)}, {v(AQ+2*d+1)}' for d in range(8)])
        nodes += [N(f'buffer_store_dwordx4 {v(AQ+4*u,4)}, {v(vL0)}, {WS}, {s(aPQW)} offen offset:{u*KB} sc1', prio=180) for u in range(2)]
        mark(nodes, lambda x: x.cls == 'mfma', {0: 13, (57 if l else 37): 14, -1: 15, -3: 16}, 32)
        mark(nodes, lambda x: 'atomic' in x.items[0], {-1: 19}, 32)
        schedule(A, nodes, verbose=vb, name='qkv', lazy=lazy)
        stamp(3)
        A.wait_vm_all()
        A.wait_lg_all()
        A('s_barrier')
        if not kvf: kvflag()
        A(f's_cmp_lg_u32 {s(sW)}, 0')
        sn = A.snapshot()
        A(f's_cbranch_scc1 {L("M_nofl")}')
        publish(flag_store(s(aFLW), vc1, off=128*l + 256), release=False)
        A.label(L('M_nofl')); A.restore(sn)
        A(f'v_mov_b32 {v(vt0)}, 1')
        stamp(4)
        fl_load = [f'buffer_load_dword {v(vP)}, {v(vCI)}, {WS}, {s(aFLR)} offen offset:{128*l} sc1']
        fl_red = [f'v_cmp_ne_u32 {mP}, 0, {v(vP)}']
        FG = CB + CB_STR + FL_OFF + 128*l
        A(f's_cmp_lt_u32 {s(sIDX)}, 28')
        sn = A.snapshot()
        A(f's_cbranch_scc1 {L("M_wo")}')
        A(f's_lshl_b32 {s(sT)}, {s(sIDX)}, 2')
        A(f's_add_u32 {s(sT)}, {s(sT)}, {s(sW)}')
        A(f's_cmp_lg_u32 {s(sT)}, {28*4}')
        A(f's_cbranch_scc1 {L("M_noagg")}')
        poll_loop(fl_load, fl_red, [f's_cmp_eq_u64 {mP}, exec'])
        A(f's_lshl_b32 {s(sT)}, {s(sGRP)}, 2')
        A(f's_add_u32 {s(sT)}, {s(sT)}, {FG}')
        flag_store(s(sT), vt0)('sc1')
        if gb == 2:
            A(f'v_and_b32 {v(vt1)}, 0x1c, {v(vL4)}')
            A(f's_mov_b32 s7, {FG}')
            poll_loop([f'buffer_load_dword {v(vP)}, {v(vt1)}, {WS}, s7 offen sc1'], fl_red, [f's_cmp_eq_u64 {mP}, exec'])
            publish(flag_store(s(aFLR), vt0, off=128*l + 512), release=False)
        A.label(L('M_noagg'))
        if gb: A('s_barrier')
        run(dma(SC_, aW13, 2*T, 8, sSH8, sT+1, 't2'))
        A.wait_vm_all(force=True)
        A('s_barrier')
        if ipf:
            A(f's_lshl_b32 {s(sT)}, {s(sIDX)}, 2')
            A(f's_add_u32 {s(sT)}, {s(sT)}, {s(sW)}')
            A(f's_mul_i32 {s(sT)}, {s(sT)}, {7*T}')
            A(f's_add_u32 {s(sT)}, {s(sT)}, {PW13 + 3*T - 112*7*T}')
            pf_until_stats(2*l+1, sT, 4*T, L('M_pfa'))
        A(f's_branch {L("M_up")}')
        A.label(L('M_wo')); A.restore(sn); A.hazard_fence()
        def soft_poll(load, behind, reduce_, check, name):
            A(load, tok='flag')
            run(behind)
            A.wait_vm_tok('flag')
            run(reduce_); run(check)
            sn = A.snapshot()
            A(f's_cbranch_scc1 {name}')
            poll_loop([load], reduce_, check)
            A.label(name); A.restore(sn)
        A(f's_cmp_ge_u32 {s(sIDX)}, 14')
        A(f's_cselect_b32 {s(sT+2)}, 16, 0')
        misc = red_addr(SA, vRA) + [f'v_and_b32 {v(vt1)}, 0x1c, {v(vL4)}', f's_mov_b32 s7, {FG}']
        if l == 0: misc = [wo_load(1, i, sT+3) for i in range(8)] + misc
        soft_poll(fl_load[0].replace(f'offset:{128*l}', f'offset:{128*l+256}'), misc, fl_red,
                  [f's_lshr_b32 {s(sT)}, s54, {s(sT+2)}', f's_and_b32 {s(sT)}, {s(sT)}, 0xffff', f's_cmp_eq_u32 {s(sT)}, 0xffff'], L('M_pqok'))
        acquire()
        pqr = lambda tt, hh, u: PQR + (((1-tt)*4 + hh)*2 + u)*4
        pql = []
        for tt in (1, 0):
            for i in range(8):
                pql.append(([f's_xor_b32 {s(sT+3)}, {s(aPQR)}, {tt*0x8000 + (i//4)*4096}'] if i % 4 == 0 else []) +
                           [f'buffer_load_dwordx4 {v(pqr(tt,i//2,i%2),4)}, {v(vL0)}, {WS}, {s(sT+3)} offen offset:{(i%4)*KB} sc1'])
        fgl = f'buffer_load_dword {v(vP)}, {v(vt1)}, {WS}, s7 offen sc1'
        if gb == 0:
            run(pql[:sp2])
            soft_poll(fgl, pql[sp2:], fl_red, [f's_cmp_eq_u64 {mP}, exec'], L('M_kvok'))
        elif gb == 1:
            run(pql)
            A(f's_cmp_lg_u32 {s(sW)}, 0')
            sn = A.snapshot()
            A(f's_cbranch_scc1 {L("M_kvok")}')
            poll_loop([fgl], fl_red, [f's_cmp_eq_u64 {mP}, exec'])
            A.label(L('M_kvok')); A.restore(sn)
            A('s_barrier')
        else:
            run(pql[:sp2])
            A(f'v_mov_b32 {v(vt1)}, 0')
            soft_poll(f'buffer_load_dword {v(vP)}, {v(vt1)}, {WS}, {s(aFLR)} offen offset:{128*l + 512} sc1', pql[sp2:], fl_red, [f's_cmp_eq_u64 {mP}, exec'], L('M_kvok'))
        stamp(5)
        nodes = nfrag([v(KVR+4*i,4) for i in range(16)], aKVR, sT+2, base=l*KV_STR, lat=kvlat)
        accw = lambda tt, c: (ACC1 if tt else KVR + 32) + 16*c
        for hh in range(4):
            nodes += V([f'v_cvt_pk_bf16_f32 {v(KVR+8*hh+d)}, {v(KVR+16*hh+2*d)}, {v(KVR+16*hh+2*d+1)}' for d in range(8)])
        nodes += V(res_init(accw(0,0)))
        un = 0
        for tt in (1, 0):
            for hh in range(4):
                Nn = NUM + 16*(un % 2); P = pqr(tt, hh, 0); d0 = vDN + 2*(un % 2); d1 = d0 + 1; un += 1
                nodes += [N(f'{MF} {v(Nn,16)}, {v(KVR+8*hh,4)}, {v(P,4)}, 0'),
                          N(f'{MF} {v(Nn,16)}, {v(KVR+8*hh+4,4)}, {v(P+4,4)}, {v(Nn,16)}')]
                nodes += V([f'v_add_f32 {v(d0)}, {v(vc0)}, {v(Nn+12)}', f'v_rcp_f32 {v(d0)}, {v(d0)}', f'v_mov_b32 {v(d1)}, {v(d0)}',
                            f'v_permlane32_swap_b32 {v(d0)}, {v(d1)}'])
                for u in range(2):
                    nodes += V([f'v_mul_f32 {v(Nn+j)}, {v(Nn+j)}, {v(d1)}' for j in range(8*u, 8*u+8)])
                    nodes += V([f'v_cvt_pk_bf16_f32 {v(P+d)}, {v(Nn+2*d)}, {v(Nn+2*d+1)}' for d in range(4*u, 4*u+4)])
                    for c in (1, 0):
                        first = (hh == 0 and u == 0) and not (tt == 0 and c == 0)
                        nodes.append(N(f'{MF} {v(accw(tt,c),16)}, {wreg(c, 2*hh+u)}, {v(P+4*u,4)}, {0 if first else v(accw(tt,c),16)}'))
            if tt == 1: nodes += red_early(accw, vRA, PQR, PQR+16)
        nodes += red_final(accw, vRA, PQR, PQR+16)
        nodes += ndma(SC_, aW13, 2*T, 8, sSH8, sT+1, 't2', anc=lin_(8, 2))
        if l == 0: nodes += w2n(W2A, W2B, anc=lin_(9, 26/max(W2B-W2A,1)))
        mark(nodes, lambda x: x.cls == 'mfma', {0: 13, 23: 14, -1: 20}, 16)
        schedule(A, nodes, verbose=vb, name='wo')
        stamp(6)
        tile_store(accw(0,0), 2*l+1)
        A.wait_lg_all(force=True)
        A('s_barrier')
        stamp(7)
        A.label(L('M_up')); A.merge(([], [], False))
        poll_stats(2*l+1)
        stamp(8)
        UA = [136, 152, 168, 184]; HO = 248
        UBS = [224, 228, 232, 236, 240, 244, 200, 204]
        A(f's_add_u32 {s(sT+3)}, {s(aHW)}, 4096')
        slot = [SD, SE, SC_, SA, SB, SD, SE]
        vnrl = TMP+11
        nodes = nfrag([v(X+4*t,4) for t in range(28)], aXA, sT, lat=xlat if l else 130, anc=lin_(1, 3 if p13 else 2, nx0 + (0 if l else 2)))
        nodes += V(stat_sum(vm_) + stat_tail(M, vm_, vve_, vr_) + [f'v_mul_f32 {v(vnrl)}, {f32(-LOG2E)}, {v(vr_)}'])
        def silu(p):
            acc = UA[p % 4]; H = HO + 4*(p % 2)
            o = []
            for j in range(8):
                e = T2 + (j % 4)*2; q = e + 1
                o += V([f'v_mul_f32 {v(e)}, {v(acc+j)}, {v(vnrl)}', f'v_mul_f32 {v(q)}, {v(acc+j)}, {v(acc+8+j)}',
                        f'v_exp_f32 {v(e)}, {v(e)}', f'v_fma_f32 {v(e)}, {v(e)}, {v(vve_)}, {v(vve_)}',
                        f'v_rcp_f32 {v(e)}, {v(e)}', f'v_mul_f32 {v(acc+j)}, {v(q)}, {v(e)}'])
            o += V([f'v_cvt_pk_bf16_f32 {v(H+d)}, {v(acc+2*d)}, {v(acc+2*d+1)}' for d in range(4)])
            so = s(aHW) if p < 4 else s(sT+3)
            tk = 'hE' if p < 4 else 'hL'
            o.append(N(f'buffer_store_dwordx4 {v(H,4)}, {v(vL0)}, {WS}, {so} offen offset:{(p%4)*KB} {"sc1" if (l == 0 or h1) else ""}', prio=(1500 if p == 6 else 60), tok=tk, xw=[('dma', tk)]))
            o[-1].dmalat = 15
            return o
        def nflag(tk, off, anc=None):
            def pre():
                A.wait_vm_tok(tk)
                publish(flag_store(s(aFHW), vc1, off=off))
            return N(['s_nop 0'], xr=[('dma', tk)], pre=pre, anc=anc)
        seq = []
        if p13:
            for t in range(29): seq += [(0, t), (1, t), (2, t)]
            for p in range(3, 7): seq += [(p, t) for t in range(29)]
        else:
            for t in range(29): seq += [(0, t), (1, t)]
            for p in range(2, 7): seq += [(p, t) for t in range(29)]
        d13 = lambda p, a_, d_, xr=(): ndma(slot[p], aW13, p*T, 8, sSH8, sT+1, f't{p}', anc=lin_(a_, d_), xr=xr)
        dq = lambda sl, m, tok, a_, d_, xr: ndma(sl, aWQ, m*T, 8, sSH8, sT+1, tok, anc=lin_(a_, d_), xr=xr) if l == 0 else []
        if p13:
            extra = {0: d13(3, 2, 6) + d13(4, 47, 3),
                 87: [nbar(xw=[('vis',3)], vm=['t3'], anc=74)],
                 116: [nbar(xw=[('use',0), ('use',1), ('use',2), 'f01', ('vis',4)], vm=['t4'], anc=90)] + d13(5, 91, 3, ['f01']) + d13(6, 115, 3, ['f01']),
                 145: [nbar(xw=[('use',3), 'f3', ('vis',5)], vm=['t5'], anc=133)] + dq(SC_, 2, 'wq', 139, 2, ['f01']) + dq(SA, 0, 'wkv', 155, 2, ['f3']),
                 174: [nbar(xw=[('use',4), 'f4', ('vis',6)], vm=['t6'], anc=162)] + dq(SB, 1, 'wkv', 171, 2, ['f4'])}
        else:
            extra = {58: d13(3, 43, 2) + d13(4, 59, 2.5),
                 87: [nbar(xw=[('use',0), ('use',1), 'f01', ('vis',3)], vm=['t3'], anc=78)] + d13(5, 80, 3, ['f01']),
                 116: [nbar(xw=[('use',2), 'f2', ('vis',4)], vm=['t4'], anc=104)] + d13(6, 106, 3, ['f01']) + dq(SC_, 2, 'wq', 130, 2, ['f2']),
                 145: [nbar(xw=[('use',3), 'f3', ('vis',5)], vm=['t5'], anc=133)] + dq(SA, 0, 'wkv', 146, 2, ['f3']),
                 174: [nbar(xw=[('use',4), 'f4', ('vis',6)], vm=['t6'], anc=162)] + dq(SB, 1, 'wkv', 164, 2, ['f4'])}
        tailn = []
        for i, (p, t) in enumerate(seq):
            if i in extra: nodes += extra[i]
            ub = UBS[i % len(UBS)]
            xa = v(X+4*t,4) if t < 28 else v(M,4)
            acc = v(UA[p % 4],16)
            rdn = lambda ub=ub, p=p, t=t: N(dsr(ub, slot[p] + t*KB), xr=[('vis',p)])
            mfn = lambda ub=ub, p=p, t=t, xa=xa, acc=acc: N(f'{MF} {acc}, {v(ub,4)}, {xa}, {acc if t else 0}', xr=[('use',p)], stream='mf')
            if i < US + len(UBS): nodes.append(rdn())
            else: tailn.append(rdn)
            if i < US: nodes.append(mfn())
            else: tailn.append(mfn)
            if t == 28 and p < (5 if s5t else 6): nodes += silu(p)
            if t == 28 and p == 3: nodes.append(nflag('hE', 128*l + 64, anc=fa))
        if l == 0: nodes += w2n(W2B, W2C, anc=lin_(70, 2) if p13 else lin_(81, 3))
        A.lg_keep = 4; MFLAT[0] = 34
        schedule(A, nodes, verbose=vb, name='up')
        stamp(17, 2)
        uptail = lambda anc=None: (silu(5) if s5t else []) + [f() for f in tailn] + silu(6) + [nflag('hL', 128*l, anc=anc)]
        A(f's_cmp_lt_u32 {s(sIDX)}, 28')
        sn = A.snapshot(); hist = list(A.hist)
        A(f's_cbranch_scc1 {L("M_down")}')
        schedule(A, uptail(), verbose=vb, name='uptail')
        stamp(9)
        A.wait_vm_all(); A.wait_lg_all(force=True)
        A('s_barrier')
        A(f's_branch {L("M_next")}')
        A.label(L('M_down')); A.restore(sn); A.hist = hist
        NT = len(seq) - US
        accd = lambda tt, c: ((136, 184) if tt else (88, 104))[c]
        HWR = [24 + 4*i for i in range(16)]
        vRD = 200
        korder = [(1, f, p) for f in range(4) for p in range(4)] + [(0, f, p) for f in range(4) for p in range(4)] + \
                 [(1, f, p) for f in range(4) for p in range(4, 7)] + [(0, f, p) for f in range(4) for p in range(4, 7)]
        fhl = lambda off: f'buffer_load_dword {v(vP)}, {v(vPH)}, {WS}, {s(aFHR)} offen offset:{off} sc1'
        def ncheck(off, name, key, anc):
            def pre():
                A(f'v_cmp_ne_u32 {mP}, 0, {v(vP)}')
                A(f's_cmp_eq_u64 {mP}, exec')
                sn = A.snapshot()
                A(f's_cbranch_scc1 {name}')
                poll_loop([fhl(off)], [f'v_cmp_ne_u32 {mP}, 0, {v(vP)}'], [f's_cmp_eq_u64 {mP}, exec'])
                A.label(name); A.restore(sn)
                acquire()
            nd = N(['s_nop 0'], xw=[key], pre=pre, anc=anc)
            nd.rd.add(('v', vP)); nd.wr.add(('c', 0))
            return nd
        hlat = 140 if (l == 0 or h1) else 90
        nodes = [N(fhl(128*l + 64), anc=0, lat=60), ncheck(128*l + 64, L('M_hE'), 'okE', ca - US)]
        nodes += uptail(NT + fl)
        nodes += [nbar(xw=[('use',5), ('use',6), 'rbfree'])]
        nodes += [N(x) for x in red_addr(SD, vRD)] + V(res_init(accd(0,0)))
        if l: nodes += V([f'v_mul_u32_u24 {v(vt0)}, 224, {v(vCI)}', f'v_lshrrev_b32 {v(vt1)}, 7, {v(vL4)}', f'v_lshl_add_u32 {v(vt0)}, {v(vt1)}, 4, {v(vt0)}'])
        seen = set()
        la = NT + 2*(32 - nh0) + ld
        for i, (tt, f, p) in enumerate(korder):
            t = 7*f + p
            if i == 32:
                nodes += [N(fhl(128*l), anc=la - 11, lat=20), ncheck(128*l, L('M_hL'), 'okL', la - 1)]
            hr = HWR[i % len(HWR)]
            anc = min(ca - US + 1 + i, NT) if i < nh0 else NT + 1 + 2*(i - nh0)
            if i >= 32: anc = max(anc, la + (i - 32))
            nodes.append(N([f's_add_u32 {s(sT)}, {s(aHR1 if tt else aHR0)}, {(t//4)*4*KB}',
                            f'buffer_load_dwordx4 {v(hr,4)}, {v(vL0)}, {WS}, {s(sT)} offen offset:{(t%4)*KB} sc1'],
                           lat=hlat, stream='vm', xr=['okE' if i < 32 else 'okL'], anc=anc))
            for c in (1, 0):
                first = (tt, c) not in seen and not (tt == 0 and c == 0); seen.add((tt, c))
                nodes.append(N(f'{MF} {v(accd(tt,c),16)}, {a((c*28+t)*4,4)}, {v(hr,4)}, {0 if first else v(accd(tt,c),16)}', stream='mf'))
            if i == 43: nodes += red_early(accd, vRD, 208, 224, xr=['rbfree'])
        nodes += red_final(accd, vRD, 208, 240)
        mark(nodes, lambda x: x.cls == 'mfma', {NT-1: 9, NT: 10}, 1)
        MFLAT[0] = 20
        schedule(A, nodes, verbose=vb, name='down', lazy=14)
        A.lg_keep = None; MFLAT[0] = 17
        A0 = accd(0,0)
        stamp(11)
        if l == 0:
            tile_store(A0, 2)
        else:
            for d in range(8): A(f'v_cvt_pk_bf16_f32 {v(vRES+d)}, {v(A0+2*d)}, {v(A0+2*d+1)}')
            for u in range(2):
                A(f'v_permlane32_swap_b32 {v(vRES+4*u)}, {v(vRES+4*u+2)}')
                A(f'v_permlane32_swap_b32 {v(vRES+4*u+1)}, {v(vRES+4*u+3)}')
                A(f'buffer_store_dwordx4 {v(vRES+4*u,4)}, {v(vt0)}, {OUT}, {s(sOUT)} offen offset:{32*u}')
        stamp(12)
        A.label(L('M_next')); A.merge(([], [], False))
        dump_ts(l)
    layer(0)
    layer(1)
    A.label('M_end')
    A('s_endpgm')
    for blk in slow_tail:
        for x in blk: A.raw(x)
    A.label('M_last')
    return A

HDR = open('cdna_kernels/' + NAME + '.s.ref').read().split('; Override launch')[0]
def assemble(A):
    n = NAME + '_kernel'
    out = HDR + '; Generated by a generator script of my own (phases: repack, qkv, wo, up, down x2 in one persistent launch).\n'
    out += '; @launch grid=(256,1,1) block=(256,1,1) lds=163840\n'
    out += '.amdgcn_target "amdgcn-amd-amdhsa--gfx950"\n.text\n'
    out += f'.globl {n}\n.p2align 8\n.type {n},@function\n{n}:\n' + A.text()
    out += f""".section .rodata,"a"
.p2align 6
.amdhsa_kernel {n}
  .amdhsa_next_free_vgpr 512
  .amdhsa_next_free_sgpr 102
  .amdhsa_accum_offset 256
  .amdhsa_group_segment_fixed_size 0
  .amdhsa_kernarg_size 80
  .amdhsa_user_sgpr_count 2
  .amdhsa_user_sgpr_kernarg_segment_ptr 1
  .amdhsa_system_sgpr_workgroup_id_x 1
  .amdhsa_float_denorm_mode_32 3
.end_amdhsa_kernel
"""
    return out

if __name__ == '__main__':
    opts = dict(a.split('=') for a in sys.argv[2:])
    M = gen_main(**{k: int(x) for k, x in opts.items()})
    print('stats', M.stats, file=sys.stderr)
    open(sys.argv[1], 'w').write(assemble(M))
```
